```python
import torch

def _softmax(x, axis=-1):
    return torch.softmax(x, dim=axis)
def _gelu(x):
    return torch.nn.functional.gelu(x, approximate="tanh")
def _silu(x):
    return torch.nn.functional.silu(x)
def _sigmoid(x):
    return torch.sigmoid(x)
def _layernorm(x, axis=-1, eps=1e-5):
    m = x.mean(dim=axis, keepdim=True)
    v = x.var(dim=axis, keepdim=True, unbiased=False)
    return (x - m) / torch.sqrt(v + eps)
def _scatter_add(tgt, idx, src, axis=0):
    return tgt.clone().index_add_(axis, idx, src)
def _segment_sum(src, seg, n):
    out = torch.zeros((n,) + src.shape[1:], dtype=src.dtype)
    return out.index_add_(0, seg, src)
def _pad(x, pw):
    flat = tuple(v for pair in reversed(pw) for v in pair)
    return torch.nn.functional.pad(x, flat)

kernel_name = 'sequential_preLN__ssm_conv_s4__geglu_ffn__prompt'

def setup_inputs():

    _w = (lambda a: (lambda t: t.to(torch.bfloat16) if t.is_floating_point() else t)(torch.as_tensor(a)))
    def _A_setup():
        B, L, D, N = 1, 2048, 448, 256
        A_re = -(lambda _x: torch.exp(torch.as_tensor(_x)))((lambda *s: torch.randn(*s, dtype=torch.bfloat16) * 3.2)(D, N))
        A_im = torch.pi * (lambda *s: torch.randn(*s, dtype=torch.bfloat16) * 0.05)(D, N)
        B_re = (lambda *s: torch.randn(*s, dtype=torch.bfloat16) * 0.05)(D, N)
        B_im = (lambda *s: torch.randn(*s, dtype=torch.bfloat16) * 0.05)(D, N)
        C_re = (lambda *s: torch.randn(*s, dtype=torch.bfloat16) * 0.05)(D, N)
        C_im = (lambda *s: torch.randn(*s, dtype=torch.bfloat16) * 0.05)(D, N)
        log_dt = (lambda *s: torch.randn(*s, dtype=torch.bfloat16) * 0.05)(D) * 0.5 - 4.0
        Dskip = (lambda *s: torch.randn(*s, dtype=torch.bfloat16) * 0.05)(D)
        return {
            "u": _w((lambda *s: torch.randn(*s, dtype=torch.bfloat16) * 0.05)(B, L, D)),
            "A_re": _w(A_re),
            "A_im": _w(A_im),
            "B_re": _w(B_re),
            "B_im": _w(B_im),
            "C_re": _w(C_re),
            "C_im": _w(C_im),
            "log_dt": _w(log_dt),
            "Dskip": _w(Dskip),
        }
    _A_in = _A_setup()

    def _B_setup():
        B, S, D, F = 1, 2048, 448, 1792
        return {
            "x": _w((lambda *s: torch.randn(*s, dtype=torch.bfloat16) * 0.05)(B, S, D)),
            "w_gate": _w((lambda *s: torch.randn(*s, dtype=torch.bfloat16) * 0.05)(D, F)),
            "w_up": _w((lambda *s: torch.randn(*s, dtype=torch.bfloat16) * 0.05)(D, F)),
            "w_down": _w((lambda *s: torch.randn(*s, dtype=torch.bfloat16) * 0.05)(F, D)),
        }
    _B_in = _B_setup()

    return {
        "A_u": _A_in["u"],
        "A_A_re": _A_in["A_re"],
        "A_A_im": _A_in["A_im"],
        "A_B_re": _A_in["B_re"],
        "A_B_im": _A_in["B_im"],
        "A_C_re": _A_in["C_re"],
        "A_C_im": _A_in["C_im"],
        "A_log_dt": _A_in["log_dt"],
        "A_Dskip": _A_in["Dskip"],
        "B_x": _B_in["x"],
        "B_w_gate": _B_in["w_gate"],
        "B_w_up": _B_in["w_up"],
        "B_w_down": _B_in["w_down"],
    }

def reference(A_u, A_A_re, A_A_im, A_B_re, A_B_im, A_C_re, A_C_im, A_log_dt, A_Dskip, B_x, B_w_gate, B_w_up, B_w_down):
    def _A_ref(u, A_re, A_im, B_re, B_im, C_re, C_im, log_dt, Dskip):
        Bsz, L, D = u.shape
        dt = torch.exp(log_dt)[:, None]
        A = A_re + 1j * A_im
        Bc = B_re + 1j * B_im
        Cc = C_re + 1j * C_im
        logdA = dt * A
        dB = dt * Bc
        l = (lambda x, dt: x.to(dt))(torch.arange(L), A_re.dtype)
        P = torch.exp(logdA[:, :, None] * l[None, None, :])
        K = torch.einsum("dn,dnl,dn->dl", Cc, P, dB).real
        L2 = 2 * L
        Kp = _pad(K, ((0, 0), (0, L)))
        up = (lambda x, *d: x.permute(*d))(u, 0, 2, 1)
        up = _pad(up, ((0, 0), (0, 0), (0, L)))
        Kf = (lambda x, axes=(-2,-1): torch.fft.rfft2(x.float(), dim=axes))(Kp[:, None, :], axes=(-2, -1))
        Uf = (lambda x, axes=(-2,-1): torch.fft.rfft2(x.float(), dim=axes))(up[:, :, None, :], axes=(-2, -1))
        Yf = Uf * Kf[None, :, :, :]
        y = (lambda x, s, axes=(-2,-1): torch.fft.irfft2(x, s=s, dim=axes).to(torch.bfloat16))(Yf, (1, L2), axes=(-2, -1))[:, :, 0, :L]
        y = (lambda x, *d: x.permute(*d))(y, 0, 2, 1) + u * Dskip[None, None, :]
        return y

    def _B_ref(x, w_gate, w_up, w_down):
        return (_gelu(x @ w_gate) * (x @ w_up)) @ w_down

    x = A_u
    h = x + _A_ref(_layernorm(x, axis=-1), A_A_re, A_A_im, A_B_re, A_B_im, A_C_re, A_C_im, A_log_dt, A_Dskip)
    h2 = h + _B_ref(_layernorm(h, axis=-1), B_w_gate, B_w_up, B_w_down)
    return h2
```

```python
import struct
def f2u(x):
    return struct.unpack('<I', struct.pack('<f', x))[0]
def fl(x):
    return "0x%08x" % f2u(x)

UR, XT, KS, WGU, CS, WD, HT, HR, ACT = 0x0, 0x200000, 0x400000, 0x800000, 0xB80000, 0xC00000, 0xE00000, 0x1000000, 0x1200000
WS_BYTES = 0x1900000
KSTR = 8704
KO = 4352

class Asm:
    def __init__(self):
        self.L = []
    def __call__(self, s, *a):
        self.L.append("    " + (s % a if a else s))
    def label(self, s):
        self.L.append(s + ":")
    def raw(self, s):
        self.L.append(s)
    def srd(self, b, p, n):
        self("s_mov_b32 s%d, s%d", b, p)
        self("s_and_b32 s%d, s%d, 0xffff", b + 1, p + 1)
        self("s_mov_b32 s%d, 0x%x", b + 2, n)
        self("s_mov_b32 s%d, 0x20000", b + 3)
    def kstart(self, name):
        self.raw(".globl %s" % name)
        self.raw(".p2align 8")
        self.raw(".type %s,@function" % name)
        self.label(name)
    def text(self):
        return "\n".join(self.L) + "\n"

def vr(b, n=1):
    return "v%d" % b if n == 1 else "v[%d:%d]" % (b, b + n - 1)
def sr(b, n=1):
    return "s%d" % b if n == 1 else "s[%d:%d]" % (b, b + n - 1)

def kd(name, vgpr, sgpr=102, agpr=0):
    acc = (vgpr + 3) // 4 * 4
    nfv = acc + agpr if agpr else vgpr
    return """.amdhsa_kernel %s
  .amdhsa_next_free_vgpr %d
  .amdhsa_next_free_sgpr %d
  .amdhsa_accum_offset %d
  .amdhsa_group_segment_fixed_size 0
  .amdhsa_kernarg_size 128
  .amdhsa_user_sgpr_count 2
  .amdhsa_user_sgpr_kernarg_segment_ptr 1
  .amdhsa_system_sgpr_workgroup_id_x 1
.end_amdhsa_kernel
""" % (name, nfv, sgpr, acc)
```

```python
from common import *
import math
LOG2E = math.log2(math.e)

def dpp_sum16(a, v, t):
    for mode in ("quad_perm:[1,0,3,2]", "quad_perm:[2,3,0,1]", "row_half_mirror", "row_mirror"):
        a("s_nop 1")
        a("v_add_f32_dpp v%d, v%d, v%d %s row_mask:0xf bank_mask:0xf", t, v, v, mode)
        a("v_mov_b32 v%d, v%d", v, t)

def ln_scalars(a, vmean, vvar, vm, vs, vt):
    a("v_cvt_pk_bf16_f32 v%d, v%d, v%d", vt, vmean, vvar)
    a("v_lshlrev_b32 v%d, 16, v%d", vm, vt)
    a("v_and_b32 v%d, 0xffff0000, v%d", vs, vt)
    a("v_add_f32 v%d, %s, v%d", vs, fl(1e-5), vs)
    a("v_cvt_pk_bf16_f32 v%d, v%d, v%d", vt, vs, vs)
    a("v_and_b32 v%d, 0xffff0000, v%d", vs, vt)
    a("v_sqrt_f32 v%d, v%d", vs, vs)
    a("s_nop 0")
    a("v_cvt_pk_bf16_f32 v%d, v%d, v%d", vt, vs, vs)
    a("v_and_b32 v%d, 0xffff0000, v%d", vs, vt)

def gen_ln1(a):
    a("s_load_dwordx2 s[4:5], s[0:1], 0")
    a("s_load_dwordx2 s[6:7], s[0:1], 120")
    a("s_lshl_b32 s20, s3, 4")
    a("v_lshrrev_b32 v1, 4, v0")
    a("v_and_b32 v2, 15, v0")
    a("v_add_u32 v3, s20, v1")
    a("s_movk_i32 s21, 896")
    a("v_mul_lo_u32 v3, v3, s21")
    a("v_lshl_add_u32 v3, v2, 3, v3")
    a("s_waitcnt lgkmcnt(0)")
    a.srd(8, 4, 2048 * 896)
    a.srd(12, 6, WS_BYTES)
    for i in range(7):
        a("buffer_load_dwordx2 v[%d:%d], v3, s[8:11], 0 offen offset:%d", 10 + 2 * i, 11 + 2 * i, 128 * i)
    a("s_movk_i32 s21, 144")
    a("v_mul_lo_u32 v4, v2, s21")
    a("v_sub_u32 v5, 15, v1")
    a("v_lshl_add_u32 v5, v5, 1, v4")
    a("v_lshl_add_u32 v6, v1, 1, v4")
    a("v_add_u32 v6, 16128, v6")
    a("s_waitcnt vmcnt(0)")
    for i in range(14):
        a("v_lshlrev_b32 v%d, 16, v%d", 30 + 2 * i, 10 + i)
        a("v_and_b32 v%d, 0xffff0000, v%d", 31 + 2 * i, 10 + i)
    a("v_add_f32 v60, v30, v31")
    a("v_add_f32 v61, v32, v33")
    for i in range(4, 28, 2):
        a("v_add_f32 v60, v60, v%d", 30 + i)
        a("v_add_f32 v61, v61, v%d", 31 + i)
    a("v_add_f32 v60, v60, v61")
    dpp_sum16(a, 60, 62)
    a("v_mul_f32 v60, %s, v60", fl(1.0 / 448))
    a("v_mov_b32 v63, 0")
    a("v_mov_b32 v64, 0")
    for i in range(0, 28, 2):
        a("v_sub_f32 v61, v%d, v60", 30 + i)
        a("v_sub_f32 v62, v%d, v60", 31 + i)
        a("v_fmac_f32 v63, v61, v61")
        a("v_fmac_f32 v64, v62, v62")
    a("v_add_f32 v63, v63, v64")
    dpp_sum16(a, 63, 62)
    a("v_mul_f32 v63, %s, v63", fl(1.0 / 448))
    ln_scalars(a, 60, 63, 64, 65, 62)
    a("v_rcp_f32 v66, v65")
    for i in range(14):
        x0, x1 = 30 + 2 * i, 31 + 2 * i
        a("v_sub_f32 v%d, v%d, v64", x0, x0)
        a("v_sub_f32 v%d, v%d, v64", x1, x1)
        a("v_cvt_pk_bf16_f32 v67, v%d, v%d", x0, x1)
        a("v_lshlrev_b32 v%d, 16, v67", x0)
        a("v_and_b32 v%d, 0xffff0000, v67", x1)
        a("v_mul_f32 v68, v%d, v66", x0)
        a("v_mul_f32 v69, v%d, v66", x1)
        a("v_fma_f32 v70, -v68, v65, v%d", x0)
        a("v_fma_f32 v71, -v69, v65, v%d", x1)
        a("v_fmac_f32 v68, v70, v66")
        a("v_fmac_f32 v69, v71, v66")
        a("v_cvt_pk_bf16_f32 v%d, v68, v69", 72 + i)
    for i in range(7):
        for j in range(4):
            op = "ds_write_b16" if j % 2 == 0 else "ds_write_b16_d16_hi"
            off = 2304 * i + 36 * j
            a("%s v5, v%d offset:%d", op, 72 + 2 * i + j // 2, off)
            a("%s v6, v%d offset:%d", op, 10 + 2 * i + j // 2, off)
    a("s_waitcnt lgkmcnt(0)")
    a("s_barrier")
    a("v_and_b32 v1, 127, v0")
    a("v_lshrrev_b32 v2, 7, v0")
    a("v_lshrrev_b32 v3, 1, v1")
    a("v_and_b32 v4, 1, v1")
    a("v_mul_u32_u24 v5, 36, v3")
    a("v_lshl_add_u32 v5, v4, 4, v5")
    a("v_mul_u32_u24 v6, 16128, v2")
    a("v_add_u32 v5, v5, v6")
    a("v_lshlrev_b32 v7, 12, v3")
    a("v_lshl_add_u32 v7, v4, 4, v7")
    a("s_nop 0")
    a("v_readfirstlane_b32 s22, v2")
    a("s_lshl_b32 s23, s20, 1")
    a("s_sub_u32 s24, %d, s23", UR + 4064)
    a("s_add_u32 s25, s23, %d", XT)
    a("s_cmp_eq_u32 s22, 0")
    a("s_cselect_b32 s24, s24, s25")
    for k in range(7):
        for j in range(4):
            a("ds_read_b32 v%d, v5 offset:%d", 10 + 4 * k + j, 2304 * k + 4 * j)
    for k in range(7):
        a("s_waitcnt lgkmcnt(%d)", min(15, 4 * (6 - k)))
        a("buffer_store_dwordx4 v[%d:%d], v7, s[12:15], s24 offen", 10 + 4 * k, 13 + 4 * k)
        a("s_add_u32 s24, s24, %d", 64 * 4096)
    a("s_endpgm")

def cmul(a, dr, di, xr, xi, yr, yi):
    a("v_mul_f32 v%d, v%d, v%d", dr, xr, yr)
    a("v_mul_f32 v%d, v%d, v%d", di, xr, yi)
    a("v_fma_f32 v%d, -v%d, v%d, v%d", dr, xi, yi, dr)
    a("v_fmac_f32 v%d, v%d, v%d", di, xi, yr)

def cexp(a, dr, di, L, va2, vbr, t0, t1):
    a("v_mul_f32 v%d, %s, v%d", t0, fl(float(L)), va2)
    a("v_mul_f32 v%d, %s, v%d", t1, fl(float(L)), vbr)
    a("v_exp_f32 v%d, v%d", t0, t0)
    a("v_fract_f32 v%d, v%d", t1, t1)
    a("v_cos_f32 v%d, v%d", dr, t1)
    a("v_sin_f32 v%d, v%d", di, t1)
    a("s_nop 0")
    a("v_mul_f32 v%d, v%d, v%d", dr, dr, t0)
    a("v_mul_f32 v%d, v%d, v%d", di, di, t0)

def gen_kgen(a):
    WR = 53 * 256
    a("s_load_dwordx4 s[4:7], s[0:1], 8")
    a("s_load_dwordx4 s[8:11], s[0:1], 24")
    a("s_load_dwordx4 s[12:15], s[0:1], 40")
    a("s_load_dwordx2 s[16:17], s[0:1], 56")
    a("s_load_dwordx2 s[18:19], s[0:1], 120")
    a("s_lshl_b32 s3, s2, 9")
    a("v_lshl_add_u32 v1, v0, 1, s3")
    a("s_lshl_b32 s3, s2, 1")
    a("v_mov_b32 v2, s3")
    a("s_waitcnt lgkmcnt(0)")
    for k in range(6):
        a("global_load_ushort v%d, v1, s[%d:%d]", 10 + k, 4 + 2 * k, 5 + 2 * k)
    a("global_load_ushort v16, v2, s[16:17]")
    a.srd(20, 18, WS_BYTES)
    a("v_and_b32 v3, 63, v0")
    a("v_lshrrev_b32 v4, 6, v0")
    a("v_mul_u32_u24 v5, %d, v4", WR)
    for k in range(16):
        a("v_xor_b32 v6, %d, v3", k << 2)
        a("v_lshl_add_u32 v%d, v6, 2, v5", 100 + k)
    a("s_waitcnt vmcnt(0)")
    for k in range(7):
        a("v_lshlrev_b32 v%d, 16, v%d", 10 + k, 10 + k)
    a("v_mul_f32 v16, %s, v16", fl(LOG2E))
    a("v_exp_f32 v16, v16")
    a("s_nop 0")
    a("v_cvt_pk_bf16_f32 v16, v16, v16")
    a("v_and_b32 v16, 0xffff0000, v16")
    a("v_mul_f32 v17, v16, v10")
    a("v_mul_f32 v18, v16, v11")
    a("v_mul_f32 v17, %s, v17", fl(LOG2E))
    a("v_mul_f32 v18, %s, v18", fl(1.0 / (2 * math.pi)))
    a("v_mul_f32 v12, v16, v12")
    a("v_mul_f32 v13, v16, v13")
    cmul(a, 20, 21, 14, 15, 12, 13)
    cexp(a, 22, 23, 1, 17, 18, 8, 9)
    cexp(a, 24, 25, 8, 17, 18, 8, 9)
    cexp(a, 30, 31, 256, 17, 18, 8, 9)
    cexp(a, 32, 33, 512, 17, 18, 8, 9)
    cexp(a, 36, 37, 1024, 17, 18, 8, 9)
    cexp(a, 44, 45, 2048, 17, 18, 8, 9)
    cmul(a, 34, 35, 30, 31, 32, 33)
    cmul(a, 38, 39, 36, 37, 30, 31)
    cmul(a, 40, 41, 36, 37, 32, 33)
    cmul(a, 42, 43, 36, 37, 34, 35)
    Q = {m: 28 + 2 * m for m in range(1, 9)}
    def wr_x(row, r):
        a("v_cvt_pk_bf16_f32 v7, v%d, -v%d", r, r + 1)
        a("ds_write_b32 v%d, v7 offset:%d", 100 + (row & 15), row * 256)
    def wr_y(j, r):
        row = 21 + j
        a("v_cvt_pk_bf16_f32 v6, v%d, v%d", r, r + 1)
        a("ds_write_b32 v%d, v6 offset:%d", 100 + (row & 15), row * 256)
    a("v_mov_b32 v50, v20")
    a("v_mov_b32 v51, v21")
    a("v_mov_b32 v70, 1.0")
    a("v_mov_b32 v71, 0")
    wr_y(0, 70)
    wr_y(1, 24)
    cur = 24
    ytasks = []
    xs = []
    for e in range(1, 8):
        xs.append(("z", e))
    for e in range(4):
        xs.append(("q", 8 + e, 1, 2 * e))
    for (row, m, e) in ((12, 2, 0), (13, 2, 4), (14, 3, 0), (15, 3, 4), (16, 4, 0), (17, 5, 0), (18, 6, 0), (19, 7, 0), (20, 8, 0)):
        xs.append(("q", row, m, e))
    wr_x(0, 50)
    for j in range(2, 32):
        nxt = 70 if cur != 70 else 72
        cmul(a, nxt, nxt + 1, cur, cur + 1, 24, 25)
        wr_y(j, nxt)
        cur = nxt
        if xs:
            t = xs.pop(0)
            if t[0] == "z":
                e = t[1]
                cmul(a, 50 + 2 * e, 51 + 2 * e, 48 + 2 * e, 49 + 2 * e, 22, 23)
                wr_x(e, 50 + 2 * e)
            else:
                _, row, m, e = t
                cmul(a, 74, 75, Q[m], Q[m] + 1, 50 + 2 * e, 51 + 2 * e)
                wr_x(row, 74)
    assert not xs
    a("v_and_b32 v6, 31, v3")
    a("v_lshrrev_b32 v7, 5, v3")
    a("v_and_b32 v8, 15, v6")
    a("v_xor_b32 v8, v8, v7")
    a("v_lshlrev_b32 v8, 4, v8")
    a("v_lshl_add_u32 v8, v6, 8, v8")
    a("v_add_u32 v8, v8, v5")
    a("v_add_u32 v9, 21, v6")
    a("v_and_b32 v10, 15, v9")
    a("v_xor_b32 v10, v10, v7")
    a("v_lshlrev_b32 v10, 4, v10")
    a("v_lshl_add_u32 v10, v9, 8, v10")
    a("v_add_u32 v10, v10, v5")
    a("s_waitcnt lgkmcnt(0)")
    for s in range(8):
        a("v_xor_b32 v11, %d, v8", 32 * s)
        a("v_xor_b32 v12, %d, v10", 32 * s)
        a("ds_read_b128 v[%d:%d], v11", 120 + 8 * s, 123 + 8 * s)
        a("ds_read_b128 v[%d:%d], v12", 124 + 8 * s, 127 + 8 * s)
    for s in range(8):
        a("s_waitcnt lgkmcnt(%d)", 2 * (7 - s))
        a("v_mfma_f32_32x32x16_bf16 v[80:95], v[%d:%d], v[%d:%d], %s", 120 + 8 * s, 123 + 8 * s, 124 + 8 * s, 127 + 8 * s,
          "0" if s == 0 else "v[80:95]")
    a("v_lshl_add_u32 v11, v3, 4, v5")
    a("s_nop 15")
    for q in range(4):
        a("ds_write_b128 v11, v[%d:%d] offset:%d", 80 + 4 * q, 83 + 4 * q, 1024 * q)
    a("s_waitcnt lgkmcnt(0)")
    a("s_barrier")
    a("v_lshlrev_b32 v11, 4, v0")
    for w in range(4):
        a("ds_read_b128 v[%d:%d], v11 offset:%d", 80 + 4 * w, 83 + 4 * w, WR * w)
    a("s_waitcnt lgkmcnt(0)")
    for j in range(4):
        a("v_add_f32 v%d, v%d, v%d", 80 + j, 80 + j, 84 + j)
        a("v_add_f32 v%d, v%d, v%d", 88 + j, 88 + j, 92 + j)
    for j in range(4):
        a("v_add_f32 v%d, v%d, v%d", 80 + j, 80 + j, 88 + j)
    a("ds_write_b128 v11, v[80:83] offset:4096")
    a("s_waitcnt lgkmcnt(0)")
    a("s_barrier")
    a("v_mov_b32 v1, v0")
    a("s_mul_i32 s24, s2, %d", KSTR)
    a("s_add_u32 s24, s24, %d", KS)
    a("s_add_u32 s25, s24, %d", KO)
    a("s_mov_b32 s26, 0")
    a.label("L_kg_exp")
    a("v_lshlrev_b32 v2, 3, v1")
    a("v_subrev_u32 v2, 15, v2")
    for k in range(9):
        t = 20 + 8 * k
        a("v_add_u32 v%d, %d, v2", t, k)
        a("v_max_i32 v%d, 0, v%d", t + 1, t)
        a("v_cvt_f32_u32 v%d, v%d", t + 1, t + 1)
        a("v_cvt_pk_bf16_f32 v%d, v%d, v%d", t + 1, t + 1, t + 1)
        a("v_and_b32 v%d, 0xffff0000, v%d", t + 1, t + 1)
        a("v_cvt_u32_f32 v%d, v%d", t + 2, t + 1)
        a("v_bfe_u32 v%d, v%d, 23, 8", t + 3, t + 1)
        a("v_subrev_u32 v%d, 134, v%d", t + 3, t + 3)
        a("v_med3_i32 v%d, v%d, 0, 3", t + 3, t + 3)
        a("v_lshrrev_b32 v%d, 8, v%d", t + 4, t + 2)
        a("v_sub_u32 v%d, 3, v%d", t + 5, t + 3)
        a("v_lshlrev_b32 v%d, v%d, v%d", t + 4, t + 5, t + 4)
        a("v_lshl_add_u32 v%d, v%d, 2, v%d", t + 4, t + 3, t + 4)
        a("v_and_b32 v%d, 7, v%d", t + 5, t + 2)
        a("v_lshrrev_b32 v%d, v%d, v%d", t + 5, t + 3, t + 5)
        a("v_add_u32 v%d, v%d, v%d", t + 4, t + 4, t + 5)
        a("v_bfe_u32 v%d, v%d, 3, 5", t + 5, t + 2)
        a("v_lshrrev_b32 v%d, 2, v%d", t + 6, t + 4)
        a("v_lshlrev_b32 v%d, 9, v%d", t + 6, t + 6)
        a("v_lshl_add_u32 v%d, v%d, 4, v%d", t + 6, t + 5, t + 6)
        a("v_and_b32 v%d, 3, v%d", t + 4, t + 4)
        a("v_lshl_add_u32 v%d, v%d, 2, v%d", t + 6, t + 4, t + 6)
        a("ds_read_b32 v%d, v%d offset:4096", t + 7, t + 6)
    a("s_waitcnt lgkmcnt(0)")
    for k in range(9):
        t = 20 + 8 * k
        a("v_cmp_le_i32 vcc, 0, v%d", t)
        a("s_nop 1")
        a("v_cndmask_b32 v%d, 0, v%d, vcc", t + 7, t + 7)
    V = [27 + 8 * k for k in range(9)]
    for k in range(4):
        a("v_cvt_pk_bf16_f32 v%d, v%d, v%d", 100 + k, V[2 * k], V[2 * k + 1])
        a("v_cvt_pk_bf16_f32 v%d, v%d, v%d", 104 + k, V[2 * k + 1], V[2 * k + 2])
    a("v_lshlrev_b32 v3, 4, v1")
    a("buffer_store_dwordx4 v[100:103], v3, s[20:23], s24 offen")
    a("buffer_store_dwordx4 v[104:107], v3, s[20:23], s25 offen")
    a("s_cmp_lg_u32 s26, 0")
    a("s_cbranch_scc1 L_kg_done")
    a("s_mov_b32 s26, 1")
    a("v_add_u32 v1, 256, v1")
    a("v_cmp_gt_u32 vcc, 258, v1")
    a("s_and_saveexec_b64 s[28:29], vcc")
    a("s_cbranch_execz L_kg_done")
    a("s_branch L_kg_exp")
    a.label("L_kg_done")
    a("s_endpgm")

def gen_k1(a):
    a.kstart("k1_kernel")
    a("s_cmp_ge_u32 s2, 576")
    a("s_cbranch_scc1 L_k1_exit")
    a("s_cmp_lt_u32 s2, 448")
    a("s_cbranch_scc1 L_k1_kgen")
    a("s_sub_u32 s3, s2, 448")
    gen_ln1(a)
    a.label("L_k1_kgen")
    gen_kgen(a)
    a.label("L_k1_exit")
    a("s_endpgm")
```

```python
from common import *

IMG = 0
URL = 33792

def gen_conv(a):
    a("s_load_dwordx2 s[4:5], s[0:1], 64")
    a("s_load_dwordx2 s[6:7], s[0:1], 120")
    a("v_and_b32 v1, 63, v0")
    a("v_lshrrev_b32 v2, 6, v0")
    a("s_nop 0")
    a("v_readfirstlane_b32 s20, v2")
    a("s_lshl_b32 s3, s2, 1")
    a("v_mov_b32 v3, s3")
    a("s_waitcnt lgkmcnt(0)")
    a.srd(8, 6, WS_BYTES)
    a("v_and_b32 v4, 1, v1")
    a("v_mul_u32_u24 v4, %d, v4", KO)
    a("v_lshrrev_b32 v5, 1, v1")
    a("v_lshl_add_u32 v4, v5, 2, v4")
    a("v_lshlrev_b32 v6, 4, v1")
    a("s_mul_i32 s21, s2, %d", KSTR)
    a("s_add_u32 s21, s21, %d", KS)
    a("s_lshl_b32 s22, s20, 7")
    a("s_add_u32 s21, s21, s22")
    a("s_lshl_b32 s23, s20, 10")
    a("s_lshl_b32 s24, s2, 12")
    a("s_add_u32 s24, s24, s23")
    a("s_add_u32 s25, s23, %d", URL)
    a("s_mov_b32 m0, s25")
    a("s_add_u32 s26, s24, %d", UR)
    a("buffer_load_dwordx4 v6, s[8:11], s26 offen lds")
    for n in range(8):
        a("s_mov_b32 m0, s23")
        a("s_add_u32 s23, s23, 4096")
        a("buffer_load_dwordx4 v4, s[8:11], s21 offen lds")
        a("s_add_u32 s21, s21, 512")
    a("s_cmp_lg_u32 s20, 0")
    a("s_cbranch_scc1 L_cv_skip33")
    a("s_mov_b32 m0, s23")
    a("s_nop 0")
    a("buffer_load_dwordx4 v4, s[8:11], s21 offen lds")
    a.label("L_cv_skip33")
    a("global_load_ushort v8, v3, s[4:5]")
    a("v_and_b32 v9, 15, v1")
    a("v_lshrrev_b32 v10, 4, v1")
    a("v_lshlrev_b32 v11, 5, v9")
    a("v_lshl_add_u32 v11, v10, 3, v11")
    a("s_lshl_b32 s27, s2, 12")
    a("s_lshl_b32 s28, s20, 10")
    a("s_add_u32 s27, s27, s28")
    a("s_add_u32 s28, s27, %d", XT)
    a("buffer_load_dwordx2 v[12:13], v11, s[8:11], s28 offen")
    a("buffer_load_dwordx2 v[14:15], v11, s[8:11], s28 offen offset:512")
    a("v_mov_b32 v16, 0")
    a("v_mov_b32 v17, 0")
    a("v_lshlrev_b32 v18, 3, v1")
    a("ds_write_b64 v18, v[16:17] offset:%d", URL + 4096)
    a("v_lshl_add_u32 v20, v10, 3, v9")
    a("v_lshlrev_b32 v20, 4, v20")
    a("s_lshl_b32 s29, s20, 10")
    a("v_add_u32 v20, s29, v20")
    a("v_lshlrev_b32 v21, 4, v10")
    a("v_lshlrev_b32 v22, 5, v9")
    a("v_sub_u32 v21, v21, v22")
    a("s_lshl_b32 s29, s20, 7")
    a("s_add_u32 s29, s29, %d", URL + 4064 - 3584)
    a("v_add_u32 v21, s29, v21")
    a("s_waitcnt vmcnt(3) lgkmcnt(0)")
    a("s_barrier")
    FB = [32, 96]
    def reads(h):
        for k in range(8):
            a("ds_read_b128 v[%d:%d], v21 offset:%d", FB[h] + 32 + 4 * k, FB[h] + 35 + 4 * k, 512 * (7 - k) + 64 * h)
            a("ds_read_b128 v[%d:%d], v20 offset:%d", FB[h] + 4 * k, FB[h] + 3 + 4 * k, 4096 * k + 512 * h)
    def mf(h):
        for bb in range(8):
            for c in range(bb, 8):
                m = c - bb
                first = (h == 0 and bb == 0)
                a("v_mfma_f32_16x16x32_bf16 v[%d:%d], v[%d:%d], v[%d:%d], %s", 160 + 4 * c, 163 + 4 * c,
                  FB[h] + 4 * bb, FB[h] + 3 + 4 * bb, FB[h] + 32 + 4 * m, FB[h] + 35 + 4 * m,
                  "0" if first else "v[%d:%d]" % (160 + 4 * c, 163 + 4 * c))
    reads(0)
    a("s_waitcnt lgkmcnt(0)")
    reads(1)
    mf(0)
    a("s_waitcnt lgkmcnt(0)")
    mf(1)
    a("s_barrier")
    a("s_lshl_b32 s29, s20, 13")
    a("v_add_u32 v22, s29, v6")
    a("s_nop 7")
    for c in range(8):
        a("ds_write_b128 v22, v[%d:%d] offset:%d", 160 + 4 * c, 163 + 4 * c, 1024 * c)
    a("s_waitcnt lgkmcnt(0)")
    a("s_barrier")
    a("s_lshl_b32 s29, s20, 11")
    a("v_add_u32 v22, s29, v6")
    for cc in range(2):
        for w in range(4):
            a("ds_read_b128 v[%d:%d], v22 offset:%d", 32 + 16 * cc + 4 * w, 35 + 16 * cc + 4 * w, 8192 * w + 1024 * cc)
    a("s_lshl_b32 s29, s20, 10")
    a("s_sub_u32 s29, %d, s29", URL + 4088 - 512)
    a("v_sub_u32 v23, s29, v11")
    a("ds_read_b64 v[70:71], v23 offset:512")
    a("ds_read_b64 v[72:73], v23")
    a("s_waitcnt vmcnt(0) lgkmcnt(0)")
    a("v_lshlrev_b32 v8, 16, v8")
    a("s_add_u32 s28, s27, %d", HT)
    for cc in range(2):
        b = 32 + 16 * cc
        for r in range(4):
            a("v_add_f32 v%d, v%d, v%d", b + r, b + r, b + 4 + r)
            a("v_add_f32 v%d, v%d, v%d", b + 8 + r, b + 8 + r, b + 12 + r)
        for r in range(4):
            a("v_add_f32 v%d, v%d, v%d", b + r, b + r, b + 8 + r)
        uu = 70 + 2 * cc
        xx = 12 + 2 * cc
        a("v_cvt_pk_bf16_f32 v80, v%d, v%d", b, b + 1)
        a("v_cvt_pk_bf16_f32 v81, v%d, v%d", b + 2, b + 3)
        a("v_lshlrev_b32 v82, 16, v80")
        a("v_and_b32 v83, 0xffff0000, v80")
        a("v_lshlrev_b32 v84, 16, v81")
        a("v_and_b32 v85, 0xffff0000, v81")
        a("v_and_b32 v86, 0xffff0000, v%d", uu + 1)
        a("v_lshlrev_b32 v87, 16, v%d", uu + 1)
        a("v_and_b32 v88, 0xffff0000, v%d", uu)
        a("v_lshlrev_b32 v89, 16, v%d", uu)
        for r in range(4):
            a("v_mul_f32 v%d, v%d, v8", 86 + r, 86 + r)
        a("v_cvt_pk_bf16_f32 v80, v86, v87")
        a("v_cvt_pk_bf16_f32 v81, v88, v89")
        a("v_lshlrev_b32 v86, 16, v80")
        a("v_and_b32 v87, 0xffff0000, v80")
        a("v_lshlrev_b32 v88, 16, v81")
        a("v_and_b32 v89, 0xffff0000, v81")
        for r in range(4):
            a("v_add_f32 v%d, v%d, v%d", 82 + r, 82 + r, 86 + r)
        a("v_cvt_pk_bf16_f32 v80, v82, v83")
        a("v_cvt_pk_bf16_f32 v81, v84, v85")
        a("v_lshlrev_b32 v82, 16, v80")
        a("v_and_b32 v83, 0xffff0000, v80")
        a("v_lshlrev_b32 v84, 16, v81")
        a("v_and_b32 v85, 0xffff0000, v81")
        a("v_lshlrev_b32 v86, 16, v%d", xx)
        a("v_and_b32 v87, 0xffff0000, v%d", xx)
        a("v_lshlrev_b32 v88, 16, v%d", xx + 1)
        a("v_and_b32 v89, 0xffff0000, v%d", xx + 1)
        for r in range(4):
            a("v_add_f32 v%d, v%d, v%d", 82 + r, 82 + r, 86 + r)
        a("v_cvt_pk_bf16_f32 v%d, v82, v83", 90 + 2 * cc)
        a("v_cvt_pk_bf16_f32 v%d, v84, v85", 91 + 2 * cc)
        a("buffer_store_dwordx2 v[%d:%d], v11, s[8:11], s28 offen offset:%d", 90 + 2 * cc, 91 + 2 * cc, 512 * cc)
    a("s_endpgm")

def gen_wprep(a):
    a("s_load_dwordx4 s[4:7], s[0:1], 80")
    a("s_load_dwordx2 s[28:29], s[0:1], 96")
    a("s_load_dwordx2 s[30:31], s[0:1], 120")
    a("v_and_b32 v1, 63, v0")
    a("v_lshrrev_b32 v2, 6, v0")
    a("s_nop 0")
    a("v_readfirstlane_b32 s20, v2")
    a("s_waitcnt lgkmcnt(0)")
    a.srd(16, 30, WS_BYTES)
    a("s_cmp_ge_u32 s3, 112")
    a("s_cbranch_scc1 L_wp_down")
    a.srd(8, 4, 448 * 3584)
    a.srd(12, 6, 448 * 3584)
    a("v_and_b32 v3, 15, v1")
    a("v_lshrrev_b32 v4, 4, v1")
    a("v_bfe_u32 v6, v3, 2, 1")
    a("v_lshlrev_b32 v6, 3, v6")
    a("v_bfe_u32 v7, v3, 3, 1")
    a("v_lshl_add_u32 v6, v7, 2, v6")
    a("v_and_b32 v7, 3, v3")
    a("v_add_u32 v6, v6, v7")
    a("s_lshl_b32 s21, s3, 4")
    a("v_add_u32 v6, s21, v6")
    a("v_lshlrev_b32 v6, 1, v6")
    a("v_mul_u32_u24 v7, %d, v4", 8 * 3584)
    a("v_add_u32 v10, v6, v7")
    for j in range(1, 8):
        a("v_add_u32 v%d, %d, v10", 10 + j, 3584 * j)
    a("v_lshrrev_b32 v6, 1, v4")
    a("v_lshlrev_b32 v6, 10, v6")
    a("v_and_b32 v7, 1, v4")
    a("v_lshl_add_u32 v6, v7, 9, v6")
    a("v_lshl_add_u32 v6, v3, 4, v6")
    a("s_mul_i32 s22, s20, %d", 32 * 3584)
    a("s_mul_i32 s24, s3, %d", 28 * 1024)
    a("s_lshl_b32 s25, s20, 11")
    a("s_add_u32 s24, s24, s25")
    a("s_add_u32 s24, s24, %d", WGU)
    a("v_mov_b32 v60, 0")
    a("v_mov_b32 v61, 0")
    a("s_mov_b32 s26, 0x3f803f80")
    for it in range(4):
        if it == 3:
            a("s_cmp_ge_u32 s20, 2")
            a("s_cbranch_scc1 L_wp_gu_done")
        for j in range(8):
            a("buffer_load_ushort v%d, v%d, s[8:11], s22 offen", 40 + j, 10 + j)
            a("buffer_load_ushort v%d, v%d, s[12:15], s22 offen", 48 + j, 10 + j)
        a("s_add_u32 s22, s22, %d", 128 * 3584)
        a("s_waitcnt vmcnt(0)")
        for q in range(8):
            a("v_lshl_or_b32 v%d, v%d, 16, v%d", 20 + q, 41 + 2 * q, 40 + 2 * q)
        a("buffer_store_dwordx4 v[20:23], v6, s[16:19], s24 offen")
        a("buffer_store_dwordx4 v[24:27], v6, s[16:19], s24 offen offset:256")
        a("s_add_u32 s24, s24, 8192")
        for q in range(4):
            a("v_dot2_f32_bf16 v60, v%d, s26, v60", 20 + q)
            a("v_dot2_f32_bf16 v61, v%d, s26, v61", 24 + q)
        a("s_nop 1")
    a.label("L_wp_gu_done")
    a("s_lshl_b32 s25, s20, 9")
    a("v_lshl_add_u32 v7, v1, 2, s25")
    a("ds_write_b32 v7, v60")
    a("ds_write_b32 v7, v61 offset:256")
    a("s_waitcnt lgkmcnt(0)")
    a("s_barrier")
    a("v_cmp_gt_u32 vcc, 32, v0")
    a("s_and_saveexec_b64 s[32:33], vcc")
    a("s_cbranch_execz L_wp_end")
    a("v_lshrrev_b32 v8, 4, v0")
    a("v_lshlrev_b32 v8, 8, v8")
    a("v_lshl_add_u32 v8, v3, 2, v8")
    for w in range(4):
        for kq in range(4):
            a("ds_read_b32 v%d, v8 offset:%d", 30 + 4 * w + kq, 512 * w + 64 * kq)
    a("s_waitcnt lgkmcnt(0)")
    for k in range(1, 16):
        a("v_add_f32 v30, v30, v%d", 30 + k)
    a("v_bfe_u32 v8, v0, 2, 1")
    a("v_lshlrev_b32 v8, 4, v8")
    a("v_lshrrev_b32 v9, 3, v0")
    a("v_lshl_add_u32 v8, v9, 2, v8")
    a("v_and_b32 v9, 3, v0")
    a("v_add_u32 v8, v8, v9")
    a("v_lshlrev_b32 v8, 2, v8")
    a("s_lshl_b32 s25, s3, 7")
    a("s_add_u32 s25, s25, %d", CS)
    a("buffer_store_dword v30, v8, s[16:19], s25 offen")
    a.label("L_wp_end")
    a("s_endpgm")
    a.label("L_wp_down")
    a.srd(8, 28, 1792 * 896)
    a("s_sub_u32 s3, s3, 112")
    a("s_lshr_b32 s21, s3, 2")
    a("s_and_b32 s22, s3, 3")
    a("s_mul_i32 s22, s22, 28")
    a("s_mul_i32 s23, s20, 7")
    a("s_add_u32 s22, s22, s23")
    a("v_and_b32 v3, 31, v1")
    a("v_lshrrev_b32 v4, 5, v1")
    a("v_bfe_u32 v6, v3, 2, 1")
    a("v_lshlrev_b32 v6, 4, v6")
    a("v_lshrrev_b32 v7, 3, v3")
    a("v_lshl_add_u32 v6, v7, 2, v6")
    a("v_and_b32 v7, 3, v3")
    a("v_add_u32 v6, v6, v7")
    a("s_lshl_b32 s23, s21, 5")
    a("v_add_u32 v6, s23, v6")
    a("v_lshlrev_b32 v6, 1, v6")
    a("v_mul_u32_u24 v7, %d, v4", 8 * 896)
    a("v_add_u32 v10, v6, v7")
    a("v_add_u32 v11, %d, v10", 4 * 896)
    a("v_lshlrev_b32 v5, 4, v1")
    a("s_mul_i32 s24, s22, %d", 16 * 896)
    a("s_mul_i32 s25, s21, 112")
    a("s_add_u32 s25, s25, s22")
    a("s_lshl_b32 s25, s25, 10")
    a("s_add_u32 s25, s25, %d", WD)
    for s in range(7):
        for j in range(8):
            a("buffer_load_ushort v%d, v%d, s[8:11], s24 offen offset:%d", 60 + 8 * s + j, 10 + j // 4, 896 * (j % 4))
        a("s_add_u32 s24, s24, %d", 16 * 896)
    for s in range(7):
        a("s_waitcnt vmcnt(%d)", 8 * (6 - s) + s)
        for q in range(4):
            a("v_lshl_or_b32 v%d, v%d, 16, v%d", 20 + 4 * s + q, 61 + 8 * s + 2 * q, 60 + 8 * s + 2 * q)
        a("buffer_store_dwordx4 v[%d:%d], v5, s[16:19], s25 offen", 20 + 4 * s, 23 + 4 * s)
        a("s_add_u32 s25, s25, 1024")
    a("s_endpgm")

def gen_k2(a):
    a.kstart("k2_kernel")
    a("s_cmp_ge_u32 s2, 616")
    a("s_cbranch_scc1 L_k2_exit")
    a("s_cmp_lt_u32 s2, 448")
    a("s_cbranch_scc1 L_k2_conv")
    a("s_sub_u32 s3, s2, 448")
    gen_wprep(a)
    a.label("L_k2_conv")
    gen_conv(a)
    a.label("L_k2_exit")
    a("s_endpgm")
```

```python
from common import *
from k1 import ln_scalars
import math
SLOT = 28672
CSL = 5 * SLOT
LDS = CSL + 896
VGPR = 256
HF = 16
ACC = [128, 144]
WB = 160
CSV = 176
T = 192

class Trk:
    def __init__(self):
        self.n = 0
    def issue(self):
        self.n += 1
        return self.n
    def need(self, idx):
        return self.n - idx

def epilogue_ops(acc, tile_store):
    ops = []
    g = lambda r: acc + r
    u = lambda r: acc + 8 + r
    tg = lambda r: T + r
    tu = lambda r: T + 8 + r
    tq = lambda r: T + 16 + r
    tp = lambda r: T + 24 + r
    for r in range(16):
        ops.append("v_fma_f32 v%d, v8, v%d, v%d" % (acc + r, CSV + r, acc + r))
    for r in range(16):
        ops.append("v_mul_f32 v%d, v9, v%d" % (acc + r, acc + r))
    for r in range(8):
        ops.append("v_cvt_pk_bf16_f32 v%d, v%d, v%d" % (tp(r), g(r), u(r)))
    for r in range(8):
        ops.append("v_lshlrev_b32 v%d, 16, v%d" % (tg(r), tp(r)))
        ops.append("v_and_b32 v%d, 0xffff0000, v%d" % (tu(r), tp(r)))
    for r in range(8):
        ops.append("v_mul_f32 v%d, v%d, v%d" % (tq(r), tg(r), tg(r)))
    for r in range(8):
        ops.append("v_fma_f32 v%d, v%d, s40, v10" % (tq(r), tq(r)))
    for r in range(8):
        ops.append("v_mul_f32 v%d, v%d, v%d" % (tq(r), tq(r), tg(r)))
    for r in range(8):
        ops.append("v_exp_f32 v%d, v%d" % (tq(r), tq(r)))
    for r in range(8):
        ops.append("v_add_f32 v%d, 1.0, v%d" % (tq(r), tq(r)))
    for r in range(8):
        ops.append("v_rcp_f32 v%d, v%d" % (tq(r), tq(r)))
    for r in range(8):
        ops.append("v_mul_f32 v%d, v%d, v%d" % (tg(r), tg(r), tq(r)))
    for r in range(0, 8, 2):
        ops.append("v_cvt_pk_bf16_f32 v%d, v%d, v%d" % (tp(r // 2), tg(r), tg(r + 1)))
    for r in range(0, 8, 2):
        ops.append("v_lshlrev_b32 v%d, 16, v%d" % (tg(r), tp(r // 2)))
        ops.append("v_and_b32 v%d, 0xffff0000, v%d" % (tg(r + 1), tp(r // 2)))
    for r in range(8):
        ops.append("v_mul_f32 v%d, v%d, v%d" % (tg(r), tg(r), tu(r)))
    for r in range(0, 8, 2):
        ops.append("v_cvt_pk_bf16_f32 v%d, v%d, v%d" % (T + 32 + r // 2, tg(r), tg(r + 1)))
    ops.append(tile_store)
    return ops

def gen_k3(a):
    a.kstart("k3_kernel")
    a("s_cmp_ge_u32 s2, 256")
    a("s_cbranch_scc1 L_k3_exit")
    a("s_load_dwordx2 s[6:7], s[0:1], 120")
    a("s_and_b32 s3, s2, 7")
    a("s_lshr_b32 s4, s2, 3")
    a("s_and_b32 s21, s3, 3")
    a("s_lshl_b32 s21, s21, 2")
    a("s_and_b32 s22, s4, 3")
    a("s_add_u32 s21, s21, s22")
    a("s_lshr_b32 s22, s3, 2")
    a("s_lshl_b32 s22, s22, 3")
    a("s_lshr_b32 s23, s4, 2")
    a("s_add_u32 s22, s22, s23")
    a("v_and_b32 v1, 63, v0")
    a("v_lshrrev_b32 v2, 6, v0")
    a("s_nop 0")
    a("v_readfirstlane_b32 s20, v2")
    a("v_lshlrev_b32 v6, 4, v1")
    a("s_waitcnt lgkmcnt(0)")
    a.srd(8, 6, WS_BYTES)
    vm = Trk()
    a("v_lshrrev_b32 v3, 2, v1")
    a("v_lshlrev_b32 v3, 12, v3")
    a("v_and_b32 v4, 3, v1")
    a("v_lshl_add_u32 v3, v4, 4, v3")
    a("s_lshl_b32 s24, s22, 8")
    a("s_lshl_b32 s25, s20, 6")
    a("s_add_u32 s24, s24, s25")
    a("s_add_u32 s24, s24, %d", HT)
    a("s_mul_i32 s26, s20, %d", SLOT)
    a("s_mov_b32 s27, s26")
    for n in range(28):
        a("s_mov_b32 m0, s27")
        a("s_add_u32 s27, s27, 1024")
        a("buffer_load_dwordx4 v3, s[8:11], s24 offen lds")
        a("s_add_u32 s24, s24, 65536")
        vm.issue()
    h_last = vm.n
    a("s_mul_i32 s28, s21, %d", 7 * SLOT)
    a("s_mul_i32 s29, s20, 7168")
    a("s_add_u32 s28, s28, s29")
    a("s_add_u32 s28, s28, %d", WGU)
    slot_of = {0: 4, 1: 0, 2: 1, 3: 2, 4: 3, 5: 4, 6: 0}
    wlast = {}
    def wdma(t):
        seq = []
        seq.append(["s_add_u32 s30, s29, %d" % (slot_of[t] * SLOT), "s_add_u32 s31, s28, %d" % (t * SLOT)])
        for q in range(7):
            if q == 4:
                seq.append(["s_add_u32 s30, s30, 4096", "s_add_u32 s31, s31, 4096"])
            g = []
            if q in (0, 4):
                g.append("s_mov_b32 m0, s30")
                g.append("s_nop 0")
            g.append("buffer_load_dwordx4 v6, s[8:11], s31 offen offset:%d lds" % (1024 * (q % 4)))
            seq.append(g)
        return seq
    def emit_wdma(t):
        for g in wdma(t):
            for i in g:
                a(i)
                if i.startswith("buffer"):
                    vm.issue()
        wlast[t] = vm.n
    emit_wdma(0)
    a("s_mul_i32 s32, s21, 896")
    a("s_add_u32 s32, s32, %d", CS)
    a("s_mov_b32 m0, %d", CSL)
    a("s_mov_b64 s[34:35], exec")
    a("s_mov_b32 exec_hi, 0x00ffffff")
    a("buffer_load_dwordx4 v6, s[8:11], s32 offen lds")
    a("s_mov_b64 exec, s[34:35]")
    vm.issue()
    cs_idx = vm.n
    a("v_and_b32 v3, 15, v1")
    a("v_lshrrev_b32 v4, 2, v3")
    a("v_lshlrev_b32 v4, 6, v4")
    a("v_bfe_u32 v5, v1, 4, 1")
    a("v_lshl_add_u32 v4, v5, 5, v4")
    a("v_bfe_u32 v5, v1, 1, 1")
    a("v_lshl_add_u32 v4, v5, 4, v4")
    a("v_and_b32 v5, 1, v1")
    a("v_lshl_add_u32 v4, v5, 3, v4")
    a("v_lshrrev_b32 v5, 5, v1")
    a("v_lshl_add_u32 v4, v5, 9, v4")
    a("v_add_u32 v4, s26, v4")
    a("s_waitcnt vmcnt(%d)", vm.need(h_last))
    for s in range(28):
        for jj in range(2):
            a("ds_read_b64_tr_b16 v[%d:%d], v4 offset:%d", HF + 4 * s + 2 * jj, HF + 4 * s + 2 * jj + 1, 1024 * s + 256 * jj)
    a("s_waitcnt vmcnt(0) lgkmcnt(0)")
    a("s_barrier")
    a("s_cmp_lg_u32 s21, 0")
    a("s_cbranch_scc1 L_k3_nohr")
    a("v_and_b32 v3, 31, v1")
    a("v_mul_u32_u24 v3, 896, v3")
    a("v_lshrrev_b32 v5, 5, v1")
    a("v_lshl_add_u32 v3, v5, 4, v3")
    a("s_lshl_b32 s33, s22, 2")
    a("s_add_u32 s33, s33, s20")
    a("s_mul_i32 s33, s33, %d", 32 * 896)
    a("s_add_u32 s33, s33, %d", HR)
    for s in range(28):
        a("buffer_store_dwordx4 v[%d:%d], v3, s[8:11], s33 offen offset:%d", HF + 4 * s, HF + 4 * s + 3, 32 * s)
    a.label("L_k3_nohr")
    vm = Trk()
    wlast[0] = 0
    for t in range(1, 5):
        emit_wdma(t)
    a("s_mov_b32 s36, 0x3f803f80")
    for k in range(4):
        a("v_mov_b32 v%d, 0", T + k)
        a("v_mov_b32 v%d, 0", T + 4 + k)
    for r in range(112):
        a("v_dot2_f32_bf16 v%d, v%d, s36, v%d", T + r % 4, HF + r, T + r % 4)
        a("v_dot2_f32_bf16 v%d, v%d, v%d, v%d", T + 4 + r % 4, HF + r, HF + r, T + 4 + r % 4)
    a("s_nop 3")
    a("v_add_f32 v%d, v%d, v%d", T, T, T + 1)
    a("v_add_f32 v%d, v%d, v%d", T + 2, T + 2, T + 3)
    a("v_add_f32 v%d, v%d, v%d", T + 4, T + 4, T + 5)
    a("v_add_f32 v%d, v%d, v%d", T + 6, T + 6, T + 7)
    a("v_add_f32 v%d, v%d, v%d", T, T, T + 2)
    a("v_add_f32 v%d, v%d, v%d", T + 4, T + 4, T + 6)
    a("v_mov_b32 v%d, v%d", T + 1, T)
    a("v_mov_b32 v%d, v%d", T + 5, T + 4)
    a("s_nop 1")
    a("v_permlane32_swap_b32 v%d, v%d", T, T + 1)
    a("v_permlane32_swap_b32 v%d, v%d", T + 4, T + 5)
    a("s_nop 1")
    a("v_add_f32 v%d, v%d, v%d", T, T, T + 1)
    a("v_add_f32 v%d, v%d, v%d", T + 4, T + 4, T + 5)
    a("v_mul_f32 v%d, %s, v%d", T, fl(1.0 / 448), T)
    a("v_mul_f32 v%d, %s, v%d", T + 4, fl(1.0 / 448), T + 4)
    a("v_fma_f32 v%d, -v%d, v%d, v%d", T + 4, T, T, T + 4)
    a("v_max_f32 v%d, 0, v%d", T + 4, T + 4)
    ln_scalars(a, T, T + 4, 8, 9, T + 8)
    a("v_rcp_f32 v%d, v9", T + 9)
    a("v_sub_f32 v8, 0, v8")
    a("v_fma_f32 v%d, -v9, v%d, 1.0", T + 10, T + 9)
    a("v_fma_f32 v9, v%d, v%d, v%d", T + 10, T + 9, T + 9)
    c0 = math.sqrt(2.0 / math.pi)
    L2E = math.log2(math.e)
    a("v_mov_b32 v10, %s", fl(-2 * L2E * c0))
    a("s_mov_b32 s40, %s", fl(-2 * L2E * c0 * 0.044715))
    a("v_lshrrev_b32 v12, 5, v1")
    a("v_lshlrev_b32 v12, 6, v12")
    a("v_add_u32 v12, %d, v12", CSL)
    a("s_lshl_b32 s41, s22, 2")
    a("s_add_u32 s41, s41, s20")
    a("s_mul_i32 s41, s41, 112")
    a("s_mul_i32 s42, s21, 7")
    a("s_add_u32 s41, s41, s42")
    a("s_lshl_b32 s41, s41, 10")
    a("s_add_u32 s41, s41, %d", ACT)
    a("v_add_u32 v13, %d, v6", 2 * SLOT)
    a("v_add_u32 v14, %d, v6", 4 * SLOT)
    def waddr(t, s):
        sl = slot_of[t]
        base = {0: (6, 0), 1: (6, SLOT), 2: (13, 0), 3: (13, SLOT), 4: (14, 0)}[sl]
        return base[0], base[1] + 1024 * s
    lg = Trk()
    PD = 4
    seq = [(t, s) for t in range(7) for s in range(28)]
    ridx = {}
    def rd(k):
        t, s = seq[k]
        vb, off = waddr(t, s)
        a("ds_read_b128 v[%d:%d], v%d offset:%d", WB + 4 * (k % PD), WB + 4 * (k % PD) + 3, vb, off)
        ridx[k] = lg.issue()
    for k in range(PD - 1):
        rd(k)
    pend = []
    pend_dma = []
    for k, (t, s) in enumerate(seq):
        kk = k + PD - 1
        if kk < len(seq) and seq[kk][1] == 0:
            tn = seq[kk][0]
            a("s_waitcnt vmcnt(%d)", vm.need(wlast[tn]))
            a("s_barrier")
            if tn in (2, 3):
                pend_dma = wdma(tn + 3)
                dma_tile = tn + 3
        if kk < len(seq):
            rd(kk)
        a("s_waitcnt lgkmcnt(%d)", lg.need(ridx[k]))
        acc = ACC[t % 2]
        a("v_mfma_f32_32x32x16_bf16 v[%d:%d], v[%d:%d], v[%d:%d], %s", acc, acc + 15, WB + 4 * (k % PD), WB + 4 * (k % PD) + 3,
          HF + 4 * s, HF + 4 * s + 3, "0" if s == 0 else "v[%d:%d]" % (acc, acc + 15))
        if pend_dma:
            g = pend_dma.pop(0)
            for i in g:
                a(i)
                if i.startswith("buffer"):
                    vm.issue()
            if not pend_dma:
                wlast[dma_tile] = vm.n
        if s == 1 and t > 0:
            for q in range(4):
                a("ds_read_b128 v[%d:%d], v12 offset:%d", CSV + 4 * q, CSV + 4 * q + 3, 128 * (t - 1) + 16 * q)
                cs_r = lg.issue()
            st = "buffer_store_dwordx4 v[%d:%d], v6, s[8:11], s41 offen offset:%d" % (T + 32, T + 35, 1024 * ((t - 1) % 4))
            pend = epilogue_ops(ACC[(t - 1) % 2], st)
            pend_cs = cs_r
        if s >= 3 and pend:
            if pend_cs is not None:
                a("s_waitcnt lgkmcnt(%d)", lg.need(pend_cs))
                pend_cs = None
            n = 6 if s < 27 else len(pend)
            for _ in range(min(n, len(pend))):
                i = pend.pop(0)
                a(i)
                if i.startswith("buffer"):
                    vm.issue()
                    if (t - 1) % 4 == 3:
                        a("s_add_u32 s41, s41, 4096")
    for q in range(4):
        a("ds_read_b128 v[%d:%d], v12 offset:%d", CSV + 4 * q, CSV + 4 * q + 3, 128 * 6 + 16 * q)
    a("s_nop 7")
    a("s_waitcnt lgkmcnt(0)")
    st = "buffer_store_dwordx4 v[%d:%d], v6, s[8:11], s41 offen offset:%d" % (T + 32, T + 35, 1024 * (6 % 4))
    for i in epilogue_ops(ACC[0], st):
        a(i)
    a.label("L_k3_exit")
    a("s_endpgm")
```

```python
from common import *
LDS = 65536
VGPR = 256
PD = 8
def gen_k4(a):
    a.kstart("k4_kernel")
    a("s_cmp_ge_u32 s2, 224")
    a("s_cbranch_scc1 L_k4_exit")
    a("s_load_dwordx2 s[6:7], s[0:1], 120")
    a("s_load_dwordx2 s[4:5], s[0:1], 104")
    a("s_and_b32 s3, s2, 7")
    a("s_lshr_b32 s16, s2, 3")
    a("s_and_b32 s21, s16, 3")
    a("s_lshl_b32 s3, s3, 2")
    a("s_add_u32 s21, s21, s3")
    a("s_lshr_b32 s22, s16, 2")
    a("v_and_b32 v1, 63, v0")
    a("v_lshrrev_b32 v2, 6, v0")
    a("s_nop 0")
    a("v_readfirstlane_b32 s20, v2")
    a("v_lshlrev_b32 v6, 4, v1")
    a("s_waitcnt lgkmcnt(0)")
    a.srd(8, 6, WS_BYTES)
    a.srd(12, 4, 2048 * 896)
    a("v_and_b32 v3, 31, v1")
    a("v_mul_u32_u24 v3, 896, v3")
    a("v_lshrrev_b32 v4, 5, v1")
    a("v_lshl_add_u32 v3, v4, 5, v3")
    a("s_lshr_b32 s23, s20, 1")
    a("s_lshl_b32 s24, s21, 1")
    a("s_add_u32 s24, s24, s23")
    a("s_mul_i32 s24, s24, %d", 32 * 896)
    a("s_and_b32 s23, s20, 1")
    a("s_lshl_b32 s25, s22, 1")
    a("s_add_u32 s25, s25, s23")
    a("s_lshl_b32 s25, s25, 6")
    a("s_add_u32 s24, s24, s25")
    a("s_add_u32 s25, s24, %d", HR)
    a("buffer_load_dwordx4 v[8:11], v3, s[8:11], s25 offen")
    a("buffer_load_dwordx4 v[12:15], v3, s[8:11], s25 offen offset:16")
    nv = 2
    a("s_mul_i32 s26, s20, 28")
    a("s_mul_i32 s27, s22, 224")
    a("s_add_u32 s27, s27, s26")
    a("s_lshl_b32 s27, s27, 10")
    a("s_add_u32 s28, s27, %d", WD)
    a("s_add_u32 s29, s28, %d", 112 * 1024)
    a("s_mul_i32 s27, s21, 224")
    a("s_add_u32 s27, s27, s26")
    a("s_lshl_b32 s27, s27, 10")
    a("s_add_u32 s30, s27, %d", ACT)
    a("s_add_u32 s31, s30, %d", 112 * 1024)
    FR = 96
    issued = []
    def ld(s):
        b = FR + 16 * (s % PD)
        order = (2, 0, 3, 1)
        for q in order:
            a("buffer_load_dwordx4 v[%d:%d], v6, s[8:11], s%d offen offset:%d", b + 4 * q, b + 4 * q + 3, 28 + q, 1024 * (s % 4))
            issued.append((s, q))
        if s % 4 == 3:
            for q in range(4):
                a("s_add_u32 s%d, s%d, 4096", 28 + q, 28 + q)
    for s in range(PD):
        ld(s)
    for s in range(28):
        b = FR + 16 * (s % PD)
        last = max(i for i, e in enumerate(issued) if e[0] == s)
        first2 = last - 2
        a("s_waitcnt vmcnt(%d)", len(issued) - 1 - first2)
        def mf(ta, tb):
            acc = 32 + 16 * (ta + 2 * tb)
            a("v_mfma_f32_32x32x16_bf16 v[%d:%d], v[%d:%d], v[%d:%d], %s", acc, acc + 15, b + 4 * ta, b + 4 * ta + 3,
              b + 8 + 4 * tb, b + 8 + 4 * tb + 3, "0" if s == 0 else "v[%d:%d]" % (acc, acc + 15))
        mf(0, 0)
        a("s_waitcnt vmcnt(%d)", len(issued) - 1 - (last - 1))
        mf(0, 1)
        a("s_waitcnt vmcnt(%d)", len(issued) - 1 - last)
        mf(1, 0)
        mf(1, 1)
        if s + PD < 28:
            ld(s + PD)
    a("s_lshl_b32 s26, s20, 14")
    a("v_add_u32 v7, s26, v6")
    a("s_nop 7")
    for tl in range(4):
        for q in range(4):
            a("ds_write_b128 v7, v[%d:%d] offset:%d", 32 + 16 * tl + 4 * q, 35 + 16 * tl + 4 * q, 4096 * tl + 1024 * q)
    a("s_waitcnt lgkmcnt(0)")
    a("s_barrier")
    a("s_lshl_b32 s26, s20, 12")
    a("v_add_u32 v7, s26, v6")
    for w in range(4):
        for q in range(4):
            a("ds_read_b128 v[%d:%d], v7 offset:%d", 32 + 16 * w + 4 * q, 35 + 16 * w + 4 * q, 16384 * w + 1024 * q)
    a("s_waitcnt lgkmcnt(0)")
    for r in range(16):
        a("v_add_f32 v%d, v%d, v%d", 32 + r, 32 + r, 48 + r)
        a("v_add_f32 v%d, v%d, v%d", 64 + r, 64 + r, 80 + r)
    for r in range(16):
        a("v_add_f32 v%d, v%d, v%d", 32 + r, 32 + r, 64 + r)
    for r in range(0, 16, 2):
        a("v_cvt_pk_bf16_f32 v%d, v%d, v%d", 48 + r // 2, 32 + r, 33 + r)
    for r in range(8):
        a("v_lshlrev_b32 v%d, 16, v%d", 32 + 2 * r, 48 + r)
        a("v_and_b32 v%d, 0xffff0000, v%d", 33 + 2 * r, 48 + r)
        a("v_lshlrev_b32 v%d, 16, v%d", 64 + 2 * r, 8 + r)
        a("v_and_b32 v%d, 0xffff0000, v%d", 65 + 2 * r, 8 + r)
    for r in range(16):
        a("v_add_f32 v%d, v%d, v%d", 32 + r, 32 + r, 64 + r)
    for r in range(0, 16, 2):
        a("v_cvt_pk_bf16_f32 v%d, v%d, v%d", 48 + r // 2, 32 + r, 33 + r)
    a("buffer_store_dwordx4 v[48:51], v3, s[12:15], s24 offen")
    a("buffer_store_dwordx4 v[52:55], v3, s[12:15], s24 offen offset:16")
    a.label("L_k4_exit")
    a("s_endpgm")
```

```python
import sys
from common import *
import k1, k2
HDR = open('sequential_preLN__ssm_conv_s4__geglu_ffn__prompt.s.ref').read().split('; Override launch')[0]
stage = int(sys.argv[1]) if len(sys.argv) > 1 else 4
a = Asm()
launches = ["; @launch kernel=k1_kernel grid=(576,1,1) block=(256,1,1) lds=54272",
            "; @launch kernel=k2_kernel grid=(616,1,1) block=(256,1,1) lds=38400"]
k1.gen_k1(a)
k2.gen_k2(a)
kds = kd("k1_kernel", 184) + kd("k2_kernel", 192)
if stage >= 3:
    import k3
    launches.append("; @launch kernel=k3_kernel grid=(256,1,1) block=(256,1,1) lds=%d" % k3.LDS)
    k3.gen_k3(a)
    kds += kd("k3_kernel", k3.VGPR)
if stage >= 4:
    import k4
    launches.append("; @launch kernel=k4_kernel grid=(224,1,1) block=(256,1,1) lds=%d" % k4.LDS)
    k4.gen_k4(a)
    kds += kd("k4_kernel", k4.VGPR)
out = HDR + "\n".join(launches) + "\n" + '.amdgcn_target "amdgcn-amd-amdhsa--gfx950"\n.text\n' + a.text()
out += '.section .rodata,"a"\n.p2align 6\n' + kds
open('sequential_preLN__ssm_conv_s4__geglu_ffn__prompt.s', 'w').write(out)
print(len(out))
```

```python
import struct
def f2u(x):
    return struct.unpack('<I', struct.pack('<f', x))[0]
def fl(x):
    return "0x%08x" % f2u(x)

UR, XT, KS, WGU, CS, WD, HT, HR, ACT = 0x0, 0x200000, 0x400000, 0x800000, 0xB80000, 0xC00000, 0xE00000, 0x1000000, 0x1200000
WS_BYTES = 0x1900000
KSTR = 8704
KO = 4352

class Asm:
    def __init__(self):
        self.L = []
    pv = 248
    def __call__(self, s, *a):
        if "%(p" in s:
            for k in range(4):
                s = s.replace("%%(p%d)d" % k, str(self.pv + k))
        self.L.append("    " + (s % a if a else s))
    def label(self, s):
        self.L.append(s + ":")
    def raw(self, s):
        self.L.append(s)
    def srd(self, b, p, n):
        self("s_mov_b32 s%d, s%d", b, p)
        self("s_and_b32 s%d, s%d, 0xffff", b + 1, p + 1)
        self("s_mov_b32 s%d, 0x%x", b + 2, n)
        self("s_mov_b32 s%d, 0x20000", b + 3)
    def kstart(self, name):
        self.raw(".globl %s" % name)
        self.raw(".p2align 8")
        self.raw(".type %s,@function" % name)
        self.label(name)
        self.kidx = getattr(self, "kidx", -1) + 1
        if self.prof:
            self("s_memrealtime s[96:97]")
    prof = False
    nst = 0
    def stamp(self):
        if not self.prof:
            return
        self("s_memtime s[%d:%d]", 60 + 2 * self.nst, 61 + 2 * self.nst)
        self("s_waitcnt lgkmcnt(0)")
        self.nst += 1
    def stamp_begin(self):
        self.nst = 0
        if self.prof:
            self("s_memrealtime s[56:57]")
        self.stamp()
    def stamp_end(self, sel, tag):
        if not self.prof:
            return
        self.stamp()
        self("s_memrealtime s[58:59]")
        self("s_load_dwordx2 s[54:55], s[0:1], 112")
        self("s_waitcnt vmcnt(0) lgkmcnt(0)")
        self("s_cmp_lg_u32 s2, %d", sel)
        self("s_cbranch_scc1 L_st_%s", tag)
        self("v_cmp_eq_u32 vcc, 0, v0")
        self("s_and_saveexec_b64 s[52:53], vcc")
        self("s_cbranch_execz L_st_%s", tag)
        self("v_mov_b32 v%(p1)d, 0")
        for i in range(2 + self.nst):
            self("v_mov_b32 v%(p0)d, s%d", 56 + 2 * i)
            self("global_store_dword v%(p1)d, v%(p0)d, s[54:55] offset:%d", 4 * i)
        self.label("L_st_%s" % tag)
    nend = 0
    def endp(self):
        if self.prof:
            self.nend += 1
            self("s_mov_b64 exec, -1")
            self("s_waitcnt vmcnt(0) lgkmcnt(0)")
            self("s_memrealtime s[98:99]")
            self("s_load_dwordx2 s[54:55], s[0:1], 120")
            self("s_waitcnt lgkmcnt(0)")
            self("v_cmp_eq_u32 vcc, 0, v0")
            self("s_and_saveexec_b64 s[52:53], vcc")
            self("s_cbranch_execz L_end_%d", self.nend)
            self("s_lshl_b32 s53, s2, 3")
            self("s_add_u32 s53, s53, 0x%x", 0x1A00000 + self.kidx * 0x10000)
            self("v_mov_b32 v%(p1)d, s53")
            self("v_mov_b32 v%(p2)d, s96")
            self("v_mov_b32 v%(p3)d, s98")
            self("global_store_dwordx2 v%(p1)d, v[%(p2)d:%(p3)d], s[54:55]")
            self.label("L_end_%d" % self.nend)
        self("s_endpgm")
    def text(self):
        return "\n".join(self.L) + "\n"

def vr(b, n=1):
    return "v%d" % b if n == 1 else "v[%d:%d]" % (b, b + n - 1)
def sr(b, n=1):
    return "s%d" % b if n == 1 else "s[%d:%d]" % (b, b + n - 1)

def kd(name, vgpr, sgpr=102, agpr=0):
    acc = (vgpr + 3) // 4 * 4
    nfv = acc + agpr if agpr else vgpr
    return """.amdhsa_kernel %s
  .amdhsa_next_free_vgpr %d
  .amdhsa_next_free_sgpr %d
  .amdhsa_accum_offset %d
  .amdhsa_group_segment_fixed_size 0
  .amdhsa_kernarg_size 128
  .amdhsa_user_sgpr_count 2
  .amdhsa_user_sgpr_kernarg_segment_ptr 1
  .amdhsa_system_sgpr_workgroup_id_x 1
.end_amdhsa_kernel
""" % (name, nfv, sgpr, acc)
```

```python
from common import *
import math
LOG2E = math.log2(math.e)

def dpp_sum16(a, v, t):
    for mode in ("quad_perm:[1,0,3,2]", "quad_perm:[2,3,0,1]", "row_half_mirror", "row_mirror"):
        a("s_nop 1")
        a("v_add_f32_dpp v%d, v%d, v%d %s row_mask:0xf bank_mask:0xf", t, v, v, mode)
        a("v_mov_b32 v%d, v%d", v, t)

def ln_scalars(a, vmean, vvar, vm, vs, vt):
    a("v_cvt_pk_bf16_f32 v%d, v%d, v%d", vt, vmean, vvar)
    a("v_lshlrev_b32 v%d, 16, v%d", vm, vt)
    a("v_and_b32 v%d, 0xffff0000, v%d", vs, vt)
    a("v_add_f32 v%d, %s, v%d", vs, fl(1e-5), vs)
    a("v_cvt_pk_bf16_f32 v%d, v%d, v%d", vt, vs, vs)
    a("v_and_b32 v%d, 0xffff0000, v%d", vs, vt)
    a("v_sqrt_f32 v%d, v%d", vs, vs)
    a("s_nop 0")
    a("v_cvt_pk_bf16_f32 v%d, v%d, v%d", vt, vs, vs)
    a("v_and_b32 v%d, 0xffff0000, v%d", vs, vt)

def gen_ln1(a):
    a("s_load_dwordx2 s[4:5], s[0:1], 0")
    a("s_load_dwordx2 s[6:7], s[0:1], 120")
    a("s_lshl_b32 s20, s3, 4")
    a("v_lshrrev_b32 v1, 4, v0")
    a("v_and_b32 v2, 15, v0")
    a("v_add_u32 v3, s20, v1")
    a("s_movk_i32 s21, 896")
    a("v_mul_lo_u32 v3, v3, s21")
    a("v_lshl_add_u32 v3, v2, 3, v3")
    a("s_waitcnt lgkmcnt(0)")
    a.srd(8, 4, 2048 * 896)
    a.srd(12, 6, WS_BYTES)
    for i in range(7):
        a("buffer_load_dwordx2 v[%d:%d], v3, s[8:11], 0 offen offset:%d", 10 + 2 * i, 11 + 2 * i, 128 * i)
    a("s_movk_i32 s21, 144")
    a("v_mul_lo_u32 v4, v2, s21")
    a("v_sub_u32 v5, 15, v1")
    a("v_lshl_add_u32 v5, v5, 1, v4")
    a("v_lshl_add_u32 v6, v1, 1, v4")
    a("v_add_u32 v6, 16128, v6")
    a("s_waitcnt vmcnt(0)")
    for i in range(14):
        a("v_lshlrev_b32 v%d, 16, v%d", 30 + 2 * i, 10 + i)
        a("v_and_b32 v%d, 0xffff0000, v%d", 31 + 2 * i, 10 + i)
    a("v_add_f32 v60, v30, v31")
    a("v_add_f32 v61, v32, v33")
    for i in range(4, 28, 2):
        a("v_add_f32 v60, v60, v%d", 30 + i)
        a("v_add_f32 v61, v61, v%d", 31 + i)
    a("v_add_f32 v60, v60, v61")
    dpp_sum16(a, 60, 62)
    a("v_mul_f32 v60, %s, v60", fl(1.0 / 448))
    a("v_mov_b32 v63, 0")
    a("v_mov_b32 v64, 0")
    for i in range(0, 28, 2):
        a("v_sub_f32 v61, v%d, v60", 30 + i)
        a("v_sub_f32 v62, v%d, v60", 31 + i)
        a("v_fmac_f32 v63, v61, v61")
        a("v_fmac_f32 v64, v62, v62")
    a("v_add_f32 v63, v63, v64")
    dpp_sum16(a, 63, 62)
    a("v_mul_f32 v63, %s, v63", fl(1.0 / 448))
    ln_scalars(a, 60, 63, 64, 65, 62)
    a("v_rcp_f32 v66, v65")
    for i in range(14):
        x0, x1 = 30 + 2 * i, 31 + 2 * i
        a("v_sub_f32 v%d, v%d, v64", x0, x0)
        a("v_sub_f32 v%d, v%d, v64", x1, x1)
        a("v_cvt_pk_bf16_f32 v67, v%d, v%d", x0, x1)
        a("v_lshlrev_b32 v%d, 16, v67", x0)
        a("v_and_b32 v%d, 0xffff0000, v67", x1)
        a("v_mul_f32 v68, v%d, v66", x0)
        a("v_mul_f32 v69, v%d, v66", x1)
        a("v_fma_f32 v70, -v68, v65, v%d", x0)
        a("v_fma_f32 v71, -v69, v65, v%d", x1)
        a("v_fmac_f32 v68, v70, v66")
        a("v_fmac_f32 v69, v71, v66")
        a("v_cvt_pk_bf16_f32 v%d, v68, v69", 72 + i)
    for i in range(7):
        for j in range(4):
            op = "ds_write_b16" if j % 2 == 0 else "ds_write_b16_d16_hi"
            off = 2304 * i + 36 * j
            a("%s v5, v%d offset:%d", op, 72 + 2 * i + j // 2, off)
            a("%s v6, v%d offset:%d", op, 10 + 2 * i + j // 2, off)
    a("s_waitcnt lgkmcnt(0)")
    a("s_barrier")
    a("v_and_b32 v1, 127, v0")
    a("v_lshrrev_b32 v2, 7, v0")
    a("v_lshrrev_b32 v3, 1, v1")
    a("v_and_b32 v4, 1, v1")
    a("v_mul_u32_u24 v5, 36, v3")
    a("v_lshl_add_u32 v5, v4, 4, v5")
    a("v_mul_u32_u24 v6, 16128, v2")
    a("v_add_u32 v5, v5, v6")
    a("v_lshlrev_b32 v7, 12, v3")
    a("v_lshl_add_u32 v7, v4, 4, v7")
    a("s_nop 0")
    a("v_readfirstlane_b32 s22, v2")
    a("s_lshl_b32 s23, s20, 1")
    a("s_sub_u32 s24, %d, s23", UR + 4064)
    a("s_add_u32 s25, s23, %d", XT)
    a("s_cmp_eq_u32 s22, 0")
    a("s_cselect_b32 s24, s24, s25")
    for k in range(7):
        for j in range(4):
            a("ds_read_b32 v%d, v5 offset:%d", 10 + 4 * k + j, 2304 * k + 4 * j)
    for k in range(7):
        a("s_waitcnt lgkmcnt(%d)", min(15, 4 * (6 - k)))
        a("buffer_store_dwordx4 v[%d:%d], v7, s[12:15], s24 offen", 10 + 4 * k, 13 + 4 * k)
        a("s_add_u32 s24, s24, %d", 64 * 4096)
    a.endp()

def cmul(a, dr, di, xr, xi, yr, yi):
    assert di == dr + 1 and xi == xr + 1 and yi == yr + 1 and dr % 2 == 0 and xr % 2 == 0 and yr % 2 == 0
    a("v_pk_mul_f32 v[%d:%d], v[%d:%d], v[%d:%d] op_sel:[0,0] op_sel_hi:[0,1]", dr, di, xr, xi, yr, yi)
    a("v_pk_fma_f32 v[%d:%d], v[%d:%d], v[%d:%d], v[%d:%d] op_sel:[1,1,0] op_sel_hi:[1,0,1] neg_lo:[1,0,0]", dr, di, xr, xi, yr, yi, dr, di)

def cexp(a, dr, di, L, va2, vbr, t0, t1):
    a("v_mul_f32 v%d, %s, v%d", t0, fl(float(L)), va2)
    a("v_mul_f32 v%d, %s, v%d", t1, fl(float(L)), vbr)
    a("v_exp_f32 v%d, v%d", t0, t0)
    a("v_fract_f32 v%d, v%d", t1, t1)
    a("v_cos_f32 v%d, v%d", dr, t1)
    a("v_sin_f32 v%d, v%d", di, t1)
    a("s_nop 0")
    a("v_mul_f32 v%d, v%d, v%d", dr, dr, t0)
    a("v_mul_f32 v%d, v%d, v%d", di, di, t0)

def gen_kgen(a):
    WR = 52 * 256
    CROW = 4 * WR
    a.stamp_begin()
    a("s_load_dwordx4 s[4:7], s[0:1], 8")
    a("s_load_dwordx4 s[8:11], s[0:1], 24")
    a("s_load_dwordx4 s[12:15], s[0:1], 40")
    a("s_load_dwordx2 s[16:17], s[0:1], 56")
    a("s_load_dwordx2 s[18:19], s[0:1], 120")
    a("s_lshl_b32 s3, s2, 9")
    a("v_lshl_add_u32 v1, v0, 1, s3")
    a("s_lshl_b32 s3, s2, 1")
    a("v_mov_b32 v2, s3")
    a("s_waitcnt lgkmcnt(0)")
    for k in range(6):
        a("global_load_ushort v%d, v1, s[%d:%d]", 10 + k, 4 + 2 * k, 5 + 2 * k)
    a("global_load_ushort v16, v2, s[16:17]")
    a.srd(20, 18, WS_BYTES)
    a("v_and_b32 v3, 63, v0")
    a("v_lshrrev_b32 v4, 6, v0")
    a("v_mul_u32_u24 v5, %d, v4", WR)
    for k in range(16):
        a("v_xor_b32 v6, %d, v3", k << 2)
        a("v_lshl_add_u32 v%d, v6, 2, v5", 100 + k)
    a("s_waitcnt vmcnt(0)")
    a.stamp()
    for k in range(7):
        a("v_lshlrev_b32 v%d, 16, v%d", 10 + k, 10 + k)
    a("v_mul_f32 v16, %s, v16", fl(LOG2E))
    a("v_exp_f32 v16, v16")
    a("s_nop 0")
    a("v_cvt_pk_bf16_f32 v16, v16, v16")
    a("v_and_b32 v16, 0xffff0000, v16")
    a("v_mul_f32 v17, v16, v10")
    a("v_mul_f32 v18, v16, v11")
    a("v_mul_f32 v17, %s, v17", fl(LOG2E))
    a("v_mul_f32 v18, %s, v18", fl(1.0 / (2 * math.pi)))
    a("v_mul_f32 v12, v16, v12")
    a("v_mul_f32 v13, v16, v13")
    cmul(a, 20, 21, 14, 15, 12, 13)
    cexp(a, 22, 23, 1, 17, 18, 8, 9)
    cexp(a, 24, 25, 8, 17, 18, 8, 9)
    cexp(a, 30, 31, 256, 17, 18, 8, 9)
    cexp(a, 32, 33, 512, 17, 18, 8, 9)
    cexp(a, 36, 37, 1024, 17, 18, 8, 9)
    cexp(a, 44, 45, 2048, 17, 18, 8, 9)
    cmul(a, 34, 35, 30, 31, 32, 33)
    cmul(a, 38, 39, 36, 37, 30, 31)
    cmul(a, 40, 41, 36, 37, 32, 33)
    cmul(a, 42, 43, 36, 37, 34, 35)
    Q = {m: 28 + 2 * m for m in range(1, 9)}
    def wr_x(row, r):
        a("v_cvt_pk_bf16_f32 v7, v%d, -v%d", r, r + 1)
        a("ds_write_b32 v%d, v7 offset:%d", 100 + (row & 15), row * 256)
    def wr_y(j, r):
        row = 20 + j
        a("v_cvt_pk_bf16_f32 v6, v%d, v%d", r, r + 1)
        a("ds_write_b32 v%d, v6 offset:%d", 100 + (row & 15), row * 256)
    a("v_mov_b32 v50, v20")
    a("v_mov_b32 v51, v21")
    a("v_mov_b32 v70, 0x3f80")
    a("v_lshlrev_b32 v71, 2, v3")
    a("ds_write_b32 v71, v70 offset:%d", CROW)
    wr_y(1, 24)
    cur = 24
    ytasks = []
    xs = []
    for e in range(1, 8):
        xs.append(("z", e))
    for e in range(4):
        xs.append(("q", 8 + e, 1, 2 * e))
    for (row, m, e) in ((12, 2, 0), (13, 2, 4), (14, 3, 0), (15, 3, 4), (16, 4, 0), (17, 5, 0), (18, 6, 0), (19, 7, 0), (20, 8, 0)):
        xs.append(("q", row, m, e))
    wr_x(0, 50)
    for j in range(2, 32):
        nxt = 70 if cur != 70 else 72
        cmul(a, nxt, nxt + 1, cur, cur + 1, 24, 25)
        wr_y(j, nxt)
        cur = nxt
        if xs:
            t = xs.pop(0)
            if t[0] == "z":
                e = t[1]
                cmul(a, 50 + 2 * e, 51 + 2 * e, 48 + 2 * e, 49 + 2 * e, 22, 23)
                wr_x(e, 50 + 2 * e)
            else:
                _, row, m, e = t
                cmul(a, 74, 75, Q[m], Q[m] + 1, 50 + 2 * e, 51 + 2 * e)
                wr_x(row, 74)
    assert not xs
    a.stamp()
    a("v_and_b32 v6, 31, v3")
    a("v_lshrrev_b32 v7, 5, v3")
    a("v_and_b32 v8, 15, v6")
    a("v_xor_b32 v8, v8, v7")
    a("v_lshlrev_b32 v8, 4, v8")
    a("v_lshl_add_u32 v8, v6, 8, v8")
    a("v_add_u32 v8, v8, v5")
    a("v_add_u32 v9, 20, v6")
    a("v_and_b32 v10, 15, v9")
    a("v_xor_b32 v10, v10, v7")
    a("v_lshlrev_b32 v10, 4, v10")
    a("v_lshl_add_u32 v10, v9, 8, v10")
    a("v_add_u32 v10, v10, v5")
    a("v_cmp_eq_u32 vcc, 0, v6")
    a("v_mov_b32 v9, %d", CROW)
    a("s_nop 0")
    a("v_cndmask_b32 v10, v10, v9, vcc")
    a("s_waitcnt lgkmcnt(0)")
    for s in range(8):
        a("v_xor_b32 v11, %d, v8", 32 * s)
        a("v_xor_b32 v12, %d, v10", 32 * s)
        a("ds_read_b128 v[%d:%d], v11", 16 + 8 * s, 19 + 8 * s)
        a("ds_read_b128 v[%d:%d], v12", 20 + 8 * s, 23 + 8 * s)
    for s in range(8):
        a("s_waitcnt lgkmcnt(%d)", 2 * (7 - s))
        a("v_mfma_f32_32x32x16_bf16 v[80:95], v[%d:%d], v[%d:%d], %s", 16 + 8 * s, 19 + 8 * s, 20 + 8 * s, 23 + 8 * s,
          "0" if s == 0 else "v[80:95]")
    a("v_lshl_add_u32 v11, v3, 4, v5")
    a("s_nop 15")
    for q in range(4):
        a("ds_write_b128 v11, v[%d:%d] offset:%d", 80 + 4 * q, 83 + 4 * q, 1024 * q)
    a("s_waitcnt lgkmcnt(0)")
    a("s_barrier")
    a("v_lshlrev_b32 v11, 4, v0")
    for w in range(4):
        a("ds_read_b128 v[%d:%d], v11 offset:%d", 80 + 4 * w, 83 + 4 * w, WR * w)
    a("s_waitcnt lgkmcnt(0)")
    for j in range(4):
        a("v_add_f32 v%d, v%d, v%d", 80 + j, 80 + j, 84 + j)
        a("v_add_f32 v%d, v%d, v%d", 88 + j, 88 + j, 92 + j)
    for j in range(4):
        a("v_add_f32 v%d, v%d, v%d", 80 + j, 80 + j, 88 + j)
    a("ds_write_b128 v11, v[80:83] offset:4096")
    a("s_waitcnt lgkmcnt(0)")
    a("s_barrier")
    a.stamp()
    a("v_mov_b32 v1, v0")
    a("s_mul_i32 s24, s2, %d", KSTR)
    a("s_add_u32 s24, s24, %d", KS)
    a("s_add_u32 s25, s24, %d", KO)
    a("s_mov_b32 s26, 0")
    a.label("L_kg_exp")
    a("v_lshlrev_b32 v2, 3, v1")
    a("v_subrev_u32 v2, 15, v2")
    for k in range(9):
        t = 20 + 8 * k
        a("v_add_u32 v%d, %d, v2", t, k)
        a("v_max_i32 v%d, 0, v%d", t + 1, t)
        a("v_cvt_f32_u32 v%d, v%d", t + 1, t + 1)
        a("v_cvt_pk_bf16_f32 v%d, v%d, v%d", t + 1, t + 1, t + 1)
        a("v_and_b32 v%d, 0xffff0000, v%d", t + 1, t + 1)
        a("v_cvt_u32_f32 v%d, v%d", t + 2, t + 1)
        a("v_bfe_u32 v%d, v%d, 23, 8", t + 3, t + 1)
        a("v_subrev_u32 v%d, 134, v%d", t + 3, t + 3)
        a("v_med3_i32 v%d, v%d, 0, 3", t + 3, t + 3)
        a("v_lshrrev_b32 v%d, 8, v%d", t + 4, t + 2)
        a("v_sub_u32 v%d, 3, v%d", t + 5, t + 3)
        a("v_lshlrev_b32 v%d, v%d, v%d", t + 4, t + 5, t + 4)
        a("v_lshl_add_u32 v%d, v%d, 2, v%d", t + 4, t + 3, t + 4)
        a("v_and_b32 v%d, 7, v%d", t + 5, t + 2)
        a("v_lshrrev_b32 v%d, v%d, v%d", t + 5, t + 3, t + 5)
        a("v_add_u32 v%d, v%d, v%d", t + 4, t + 4, t + 5)
        a("v_bfe_u32 v%d, v%d, 3, 5", t + 5, t + 2)
        a("v_lshrrev_b32 v%d, 2, v%d", t + 6, t + 4)
        a("v_lshlrev_b32 v%d, 9, v%d", t + 6, t + 6)
        a("v_lshl_add_u32 v%d, v%d, 4, v%d", t + 6, t + 5, t + 6)
        a("v_and_b32 v%d, 3, v%d", t + 4, t + 4)
        a("v_lshl_add_u32 v%d, v%d, 2, v%d", t + 6, t + 4, t + 6)
        a("ds_read_b32 v%d, v%d offset:4096", t + 7, t + 6)
    a("s_waitcnt lgkmcnt(0)")
    for k in range(9):
        t = 20 + 8 * k
        a("v_cmp_le_i32 vcc, 0, v%d", t)
        a("s_nop 1")
        a("v_cndmask_b32 v%d, 0, v%d, vcc", t + 7, t + 7)
    V = [27 + 8 * k for k in range(9)]
    for k in range(4):
        a("v_cvt_pk_bf16_f32 v%d, v%d, v%d", 100 + k, V[2 * k], V[2 * k + 1])
        a("v_cvt_pk_bf16_f32 v%d, v%d, v%d", 104 + k, V[2 * k + 1], V[2 * k + 2])
    a("v_lshlrev_b32 v3, 4, v1")
    a("buffer_store_dwordx4 v[100:103], v3, s[20:23], s24 offen")
    a("buffer_store_dwordx4 v[104:107], v3, s[20:23], s25 offen")
    a("s_cmp_lg_u32 s26, 0")
    a("s_cbranch_scc1 L_kg_done")
    a("s_mov_b32 s26, 1")
    a("v_add_u32 v1, 256, v1")
    a("v_cmp_gt_u32 vcc, 258, v1")
    a("s_and_saveexec_b64 s[28:29], vcc")
    a("s_cbranch_execz L_kg_done")
    a("s_branch L_kg_exp")
    a.label("L_kg_done")
    a("s_mov_b64 exec, -1")
    a.stamp_end(100, "kg")
    a.endp()

def gen_k1(a):
    a.kstart("k1_kernel")
    a("s_cmp_ge_u32 s2, 744")
    a("s_cbranch_scc1 L_k1_exit")
    a("s_cmp_lt_u32 s2, 448")
    a("s_cbranch_scc1 L_k1_kgen")
    a("s_cmp_lt_u32 s2, 576")
    a("s_cbranch_scc1 L_k1_ln1")
    a("s_sub_u32 s3, s2, 576")
    import k2
    k2.gen_wprep(a)
    a.label("L_k1_ln1")
    a("s_sub_u32 s3, s2, 448")
    gen_ln1(a)
    a.label("L_k1_kgen")
    gen_kgen(a)
    a.label("L_k1_exit")
    a("s_endpgm")
```

```python
from common import *

IMG = 0
URL = 33792

def gen_conv(a):
    a.stamp_begin()
    a("s_load_dwordx2 s[4:5], s[0:1], 64")
    a("s_load_dwordx2 s[6:7], s[0:1], 120")
    a("v_and_b32 v1, 63, v0")
    a("v_lshrrev_b32 v2, 6, v0")
    a("s_nop 0")
    a("v_readfirstlane_b32 s20, v2")
    a("s_lshl_b32 s3, s2, 1")
    a("v_mov_b32 v3, s3")
    a("s_waitcnt lgkmcnt(0)")
    a.srd(8, 6, WS_BYTES)
    a("v_and_b32 v4, 1, v1")
    a("v_mul_u32_u24 v4, %d, v4", KO)
    a("v_lshrrev_b32 v5, 1, v1")
    a("v_lshl_add_u32 v4, v5, 2, v4")
    a("v_lshlrev_b32 v6, 4, v1")
    a("s_mul_i32 s21, s2, %d", KSTR)
    a("s_add_u32 s21, s21, %d", KS)
    a("s_lshl_b32 s22, s20, 7")
    a("s_add_u32 s21, s21, s22")
    a("s_lshl_b32 s23, s20, 10")
    a("s_lshl_b32 s24, s2, 12")
    a("s_add_u32 s24, s24, s23")
    a("s_add_u32 s25, s23, %d", URL)
    a("s_mov_b32 m0, s25")
    a("s_add_u32 s26, s24, %d", UR)
    a("buffer_load_dwordx4 v6, s[8:11], s26 offen lds")
    for n in range(8):
        a("s_mov_b32 m0, s23")
        a("s_add_u32 s23, s23, 4096")
        a("buffer_load_dwordx4 v4, s[8:11], s21 offen lds")
        a("s_add_u32 s21, s21, 512")
    a("s_cmp_lg_u32 s20, 0")
    a("s_cbranch_scc1 L_cv_skip33")
    a("s_mov_b32 m0, s23")
    a("s_nop 0")
    a("buffer_load_dwordx4 v4, s[8:11], s21 offen lds")
    a.label("L_cv_skip33")
    a("global_load_ushort v8, v3, s[4:5]")
    a("v_and_b32 v9, 15, v1")
    a("v_lshrrev_b32 v10, 4, v1")
    a("v_lshlrev_b32 v11, 5, v9")
    a("v_lshl_add_u32 v11, v10, 3, v11")
    a("s_lshl_b32 s27, s2, 12")
    a("s_lshl_b32 s28, s20, 10")
    a("s_add_u32 s27, s27, s28")
    a("s_add_u32 s28, s27, %d", XT)
    a("buffer_load_dwordx2 v[12:13], v11, s[8:11], s28 offen")
    a("buffer_load_dwordx2 v[14:15], v11, s[8:11], s28 offen offset:512")
    a("v_mov_b32 v16, 0")
    a("v_mov_b32 v17, 0")
    a("v_lshlrev_b32 v18, 3, v1")
    a("ds_write_b64 v18, v[16:17] offset:%d", URL + 4096)
    a("v_lshl_add_u32 v20, v10, 3, v9")
    a("v_lshlrev_b32 v20, 4, v20")
    a("s_lshl_b32 s29, s20, 10")
    a("v_add_u32 v20, s29, v20")
    a("v_lshlrev_b32 v21, 4, v10")
    a("v_lshlrev_b32 v22, 5, v9")
    a("v_sub_u32 v21, v21, v22")
    a("s_lshl_b32 s29, s20, 7")
    a("s_add_u32 s29, s29, %d", URL + 4064 - 3584)
    a("v_add_u32 v21, s29, v21")
    a("s_waitcnt vmcnt(3) lgkmcnt(0)")
    a.stamp()
    a("s_barrier")
    a.stamp()
    FB = [32, 96]
    def reads(h):
        for k in range(8):
            a("ds_read_b128 v[%d:%d], v21 offset:%d", FB[h] + 32 + 4 * k, FB[h] + 35 + 4 * k, 512 * (7 - k) + 64 * h)
            a("ds_read_b128 v[%d:%d], v20 offset:%d", FB[h] + 4 * k, FB[h] + 3 + 4 * k, 4096 * k + 512 * h)
    def mf(h):
        for bb in range(8):
            for c in range(bb, 8):
                m = c - bb
                first = (h == 0 and bb == 0)
                a("v_mfma_f32_16x16x32_bf16 v[%d:%d], v[%d:%d], v[%d:%d], %s", 160 + 4 * c, 163 + 4 * c,
                  FB[h] + 4 * bb, FB[h] + 3 + 4 * bb, FB[h] + 32 + 4 * m, FB[h] + 35 + 4 * m,
                  "0" if first else "v[%d:%d]" % (160 + 4 * c, 163 + 4 * c))
    reads(0)
    a("s_waitcnt lgkmcnt(0)")
    reads(1)
    mf(0)
    a("s_waitcnt lgkmcnt(0)")
    a("s_and_b32 s30, s2, 1")
    a("s_mul_i32 s30, s30, %d", 8 * 7 * 28672)
    a("s_lshr_b32 s31, s2, 3")
    a("s_lshl_b32 s31, s31, 2")
    a("s_add_u32 s31, s31, s20")
    a("s_mul_i32 s31, s31, 7168")
    a("s_add_u32 s30, s30, s31")
    a("s_add_u32 s30, s30, %d", WGU)
    for q in range(7):
        if q == 4:
            a("s_add_u32 s30, s30, 4096")
        a("buffer_load_dwordx4 v[28:31], v6, s[8:11], s30 offen offset:%d", 1024 * (q % 4))
    a("s_mov_b32 exec_hi, -1")
    mf(1)
    a.stamp()
    a("s_barrier")
    a("s_lshl_b32 s29, s20, 13")
    a("v_add_u32 v22, s29, v6")
    a("s_nop 7")
    for c in range(8):
        a("ds_write_b128 v22, v[%d:%d] offset:%d", 160 + 4 * c, 163 + 4 * c, 1024 * c)
    a("s_waitcnt lgkmcnt(0)")
    a("s_barrier")
    a("s_lshl_b32 s29, s20, 11")
    a("v_add_u32 v22, s29, v6")
    for cc in range(2):
        for w in range(4):
            a("ds_read_b128 v[%d:%d], v22 offset:%d", 32 + 16 * cc + 4 * w, 35 + 16 * cc + 4 * w, 8192 * w + 1024 * cc)
    a("s_lshl_b32 s29, s20, 10")
    a("s_sub_u32 s29, %d, s29", URL + 4088 - 512)
    a("v_sub_u32 v23, s29, v11")
    a("ds_read_b64 v[70:71], v23 offset:512")
    a("ds_read_b64 v[72:73], v23")
    a("s_waitcnt vmcnt(7) lgkmcnt(0)")
    a("v_lshlrev_b32 v8, 16, v8")
    a("v_lshrrev_b32 v24, 1, v9")
    a("v_mul_u32_u24 v24, 28672, v24")
    a("v_and_b32 v25, 1, v9")
    a("v_lshl_add_u32 v24, v25, 5, v24")
    a("v_lshl_add_u32 v24, v10, 3, v24")
    a("s_mul_i32 s28, s20, %d", 16 * 28672)
    a("s_lshl_b32 s29, s2, 6")
    a("s_add_u32 s28, s28, s29")
    a("s_add_u32 s28, s28, %d", HT)
    for cc in range(2):
        b = 32 + 16 * cc
        for r in range(4):
            a("v_add_f32 v%d, v%d, v%d", b + r, b + r, b + 4 + r)
            a("v_add_f32 v%d, v%d, v%d", b + 8 + r, b + 8 + r, b + 12 + r)
        for r in range(4):
            a("v_add_f32 v%d, v%d, v%d", b + r, b + r, b + 8 + r)
        uu = 70 + 2 * cc
        xx = 12 + 2 * cc
        a("v_cvt_pk_bf16_f32 v80, v%d, v%d", b, b + 1)
        a("v_cvt_pk_bf16_f32 v81, v%d, v%d", b + 2, b + 3)
        a("v_lshlrev_b32 v82, 16, v80")
        a("v_and_b32 v83, 0xffff0000, v80")
        a("v_lshlrev_b32 v84, 16, v81")
        a("v_and_b32 v85, 0xffff0000, v81")
        a("v_and_b32 v86, 0xffff0000, v%d", uu + 1)
        a("v_lshlrev_b32 v87, 16, v%d", uu + 1)
        a("v_and_b32 v88, 0xffff0000, v%d", uu)
        a("v_lshlrev_b32 v89, 16, v%d", uu)
        for r in range(4):
            a("v_mul_f32 v%d, v%d, v8", 86 + r, 86 + r)
        a("v_cvt_pk_bf16_f32 v80, v86, v87")
        a("v_cvt_pk_bf16_f32 v81, v88, v89")
        a("v_lshlrev_b32 v86, 16, v80")
        a("v_and_b32 v87, 0xffff0000, v80")
        a("v_lshlrev_b32 v88, 16, v81")
        a("v_and_b32 v89, 0xffff0000, v81")
        for r in range(4):
            a("v_add_f32 v%d, v%d, v%d", 82 + r, 82 + r, 86 + r)
        a("v_cvt_pk_bf16_f32 v80, v82, v83")
        a("v_cvt_pk_bf16_f32 v81, v84, v85")
        a("v_lshlrev_b32 v82, 16, v80")
        a("v_and_b32 v83, 0xffff0000, v80")
        a("v_lshlrev_b32 v84, 16, v81")
        a("v_and_b32 v85, 0xffff0000, v81")
        a("v_lshlrev_b32 v86, 16, v%d", xx)
        a("v_and_b32 v87, 0xffff0000, v%d", xx)
        a("v_lshlrev_b32 v88, 16, v%d", xx + 1)
        a("v_and_b32 v89, 0xffff0000, v%d", xx + 1)
        for r in range(4):
            a("v_add_f32 v%d, v%d, v%d", 82 + r, 82 + r, 86 + r)
        a("v_cvt_pk_bf16_f32 v%d, v82, v83", 90 + 2 * cc)
        a("v_cvt_pk_bf16_f32 v%d, v84, v85", 91 + 2 * cc)
        a("buffer_store_dwordx2 v[%d:%d], v24, s[8:11], s28 offen", 90 + 2 * cc, 91 + 2 * cc)
        a("s_add_u32 s28, s28, %d", 8 * 28672)
    a.stamp()
    a.stamp_end(100, "cv")
    a.endp()

def gen_wprep(a):
    a("s_load_dwordx4 s[4:7], s[0:1], 80")
    a("s_load_dwordx2 s[28:29], s[0:1], 96")
    a("s_load_dwordx2 s[30:31], s[0:1], 120")
    a("v_and_b32 v1, 63, v0")
    a("v_lshrrev_b32 v2, 6, v0")
    a("s_nop 0")
    a("v_readfirstlane_b32 s20, v2")
    a("s_waitcnt lgkmcnt(0)")
    a.srd(16, 30, WS_BYTES)
    a("s_cmp_ge_u32 s3, 112")
    a("s_cbranch_scc1 L_wp_down")
    a.srd(8, 4, 448 * 3584)
    a.srd(12, 6, 448 * 3584)
    a("v_and_b32 v3, 15, v1")
    a("v_lshrrev_b32 v4, 4, v1")
    a("v_bfe_u32 v6, v3, 2, 1")
    a("v_lshlrev_b32 v6, 3, v6")
    a("v_bfe_u32 v7, v3, 3, 1")
    a("v_lshl_add_u32 v6, v7, 2, v6")
    a("v_and_b32 v7, 3, v3")
    a("v_add_u32 v6, v6, v7")
    a("s_lshl_b32 s21, s3, 4")
    a("v_add_u32 v6, s21, v6")
    a("v_lshlrev_b32 v6, 1, v6")
    a("v_mul_u32_u24 v7, %d, v4", 8 * 3584)
    a("v_add_u32 v10, v6, v7")
    for j in range(1, 8):
        a("v_add_u32 v%d, %d, v10", 10 + j, 3584 * j)
    a("v_lshrrev_b32 v6, 1, v4")
    a("v_lshlrev_b32 v6, 10, v6")
    a("v_and_b32 v7, 1, v4")
    a("v_lshl_add_u32 v6, v7, 9, v6")
    a("v_lshl_add_u32 v6, v3, 4, v6")
    a("s_mul_i32 s22, s20, %d", 32 * 3584)
    a("s_mul_i32 s24, s3, %d", 28 * 1024)
    a("s_lshl_b32 s25, s20, 11")
    a("s_add_u32 s24, s24, s25")
    a("s_add_u32 s24, s24, %d", WGU)
    a("v_mov_b32 v110, 0")
    a("v_mov_b32 v111, 0")
    a("s_mov_b32 s26, 0x3f803f80")
    def L(it):
        for j in range(8):
            a("buffer_load_ushort v%d, v%d, s[8:11], s22 offen", 40 + 16 * it + j, 10 + j)
            a("buffer_load_ushort v%d, v%d, s[12:15], s22 offen", 48 + 16 * it + j, 10 + j)
        a("s_add_u32 s22, s22, %d", 128 * 3584)
    def P(it, n):
        a("s_waitcnt vmcnt(%d)", n)
        b = 40 + 16 * it
        o = 20 + 8 * (it % 2)
        for q in range(8):
            a("v_lshl_or_b32 v%d, v%d, 16, v%d", o + q, b + 1 + 2 * q, b + 2 * q)
        if it == 3:
            a("s_cmp_ge_u32 s20, 2")
            a("s_cbranch_scc1 L_wp_gu_done")
        a("buffer_store_dwordx4 v[%d:%d], v6, s[16:19], s24 offen", o, o + 3)
        a("buffer_store_dwordx4 v[%d:%d], v6, s[16:19], s24 offen offset:256", o + 4, o + 7)
        a("s_add_u32 s24, s24, 8192")
        for q in range(4):
            a("v_dot2_f32_bf16 v110, v%d, s26, v110", o + q)
            a("v_dot2_f32_bf16 v111, v%d, s26, v111", o + 4 + q)
    L(0); L(1); L(2)
    P(0, 32)
    L(3)
    P(1, 34)
    P(2, 20)
    P(3, 4)
    a.label("L_wp_gu_done")
    a("s_nop 3")
    a("s_lshl_b32 s25, s20, 9")
    a("v_lshl_add_u32 v7, v1, 2, s25")
    a("ds_write_b32 v7, v110")
    a("ds_write_b32 v7, v111 offset:256")
    a("s_waitcnt lgkmcnt(0)")
    a("s_barrier")
    a("v_cmp_gt_u32 vcc, 32, v0")
    a("s_and_saveexec_b64 s[32:33], vcc")
    a("s_cbranch_execz L_wp_end")
    a("v_lshrrev_b32 v8, 4, v0")
    a("v_lshlrev_b32 v8, 8, v8")
    a("v_lshl_add_u32 v8, v3, 2, v8")
    for w in range(4):
        for kq in range(4):
            a("ds_read_b32 v%d, v8 offset:%d", 30 + 4 * w + kq, 512 * w + 64 * kq)
    a("s_waitcnt lgkmcnt(0)")
    for k in range(1, 16):
        a("v_add_f32 v30, v30, v%d", 30 + k)
    a("v_bfe_u32 v8, v0, 2, 1")
    a("v_lshlrev_b32 v8, 4, v8")
    a("v_lshrrev_b32 v9, 3, v0")
    a("v_lshl_add_u32 v8, v9, 2, v8")
    a("v_and_b32 v9, 3, v0")
    a("v_add_u32 v8, v8, v9")
    a("v_lshlrev_b32 v8, 2, v8")
    a("s_lshl_b32 s25, s3, 7")
    a("s_add_u32 s25, s25, %d", CS)
    a("buffer_store_dword v30, v8, s[16:19], s25 offen")
    a.label("L_wp_end")
    a.endp()
    a.label("L_wp_down")
    a.srd(8, 28, 1792 * 896)
    a("s_sub_u32 s3, s3, 112")
    a("s_lshr_b32 s21, s3, 2")
    a("s_and_b32 s22, s3, 3")
    a("s_mul_i32 s22, s22, 28")
    a("s_mul_i32 s23, s20, 7")
    a("s_add_u32 s22, s22, s23")
    a("v_and_b32 v3, 31, v1")
    a("v_lshrrev_b32 v4, 5, v1")
    a("v_bfe_u32 v6, v3, 2, 1")
    a("v_lshlrev_b32 v6, 4, v6")
    a("v_lshrrev_b32 v7, 3, v3")
    a("v_lshl_add_u32 v6, v7, 2, v6")
    a("v_and_b32 v7, 3, v3")
    a("v_add_u32 v6, v6, v7")
    a("s_lshl_b32 s23, s21, 5")
    a("v_add_u32 v6, s23, v6")
    a("v_lshlrev_b32 v6, 1, v6")
    a("v_mul_u32_u24 v7, %d, v4", 8 * 896)
    a("v_add_u32 v10, v6, v7")
    a("v_add_u32 v11, %d, v10", 4 * 896)
    a("v_lshlrev_b32 v5, 4, v1")
    a("s_mul_i32 s24, s22, %d", 16 * 896)
    a("s_mul_i32 s25, s21, 112")
    a("s_add_u32 s25, s25, s22")
    a("s_lshl_b32 s25, s25, 10")
    a("s_add_u32 s25, s25, %d", WD)
    for s in range(7):
        for j in range(8):
            a("buffer_load_ushort v%d, v%d, s[8:11], s24 offen offset:%d", 60 + 8 * s + j, 10 + j // 4, 896 * (j % 4))
        a("s_add_u32 s24, s24, %d", 16 * 896)
    for s in range(7):
        a("s_waitcnt vmcnt(%d)", 8 * (6 - s) + s)
        for q in range(4):
            a("v_lshl_or_b32 v%d, v%d, 16, v%d", 20 + 4 * s + q, 61 + 8 * s + 2 * q, 60 + 8 * s + 2 * q)
        a("buffer_store_dwordx4 v[%d:%d], v5, s[16:19], s25 offen", 20 + 4 * s, 23 + 4 * s)
        a("s_add_u32 s25, s25, 1024")
    a.endp()

def gen_k2(a):
    a.kstart("k2_kernel")
    a("s_cmp_ge_u32 s2, 448")
    a("s_cbranch_scc1 L_k2_exit")
    gen_conv(a)
    a.label("L_k2_exit")
    a("s_endpgm")
```

```python
from common import *
from k1 import ln_scalars
import math
SLOT = 28672
CSL = 155648
STX = 159744
LDS = STX + 4096
VGPR = 256
HF = 16
ACC = [128, 144]
WB = 160
CSV = 176
T = 192

class Trk:
    def __init__(self):
        self.n = 0
    def issue(self):
        self.n += 1
        return self.n
    def need(self, idx):
        return self.n - idx

def epilogue_ops(acc, tile_store, pk):
    ops = []
    g = lambda r: acc + r
    u = lambda r: acc + 8 + r
    tg = lambda r: T + r
    tu = lambda r: T + 8 + r
    tq = lambda r: T + 16 + r
    tp = lambda r: T + 24 + r
    P = lambda r: "v[%d:%d]" % (r, r + 1)
    def mul(d, x, y, n):
        if pk:
            for r in range(0, n, 2):
                ops.append("v_pk_mul_f32 %s, %s, %s" % (P(d + r), P(x + r), P(y + r)))
        else:
            for r in range(n):
                ops.append("v_mul_f32 v%d, v%d, v%d" % (d + r, x + r, y + r))
    if pk:
        for r in range(0, 16, 2):
            ops.append("v_pk_fma_f32 %s, v[8:9], %s, %s op_sel:[0,0,0] op_sel_hi:[0,1,1]" % (P(acc + r), P(CSV + r), P(acc + r)))
        for r in range(0, 16, 2):
            ops.append("v_pk_mul_f32 %s, v[8:9], %s op_sel:[1,0] op_sel_hi:[1,1]" % (P(acc + r), P(acc + r)))
    else:
        for r in range(16):
            ops.append("v_fma_f32 v%d, v8, v%d, v%d" % (acc + r, CSV + r, acc + r))
        for r in range(16):
            ops.append("v_mul_f32 v%d, v9, v%d" % (acc + r, acc + r))
    for r in range(8):
        ops.append("v_cvt_pk_bf16_f32 v%d, v%d, v%d" % (tp(r), g(r), u(r)))
    for r in range(8):
        ops.append("v_lshlrev_b32 v%d, 16, v%d" % (tg(r), tp(r)))
        ops.append("v_and_b32 v%d, 0xffff0000, v%d" % (tu(r), tp(r)))
    mul(tq(0), tg(0), tg(0), 8)
    if pk:
        for r in range(0, 8, 2):
            ops.append("v_pk_fma_f32 %s, %s, v[2:3], v[2:3] op_sel:[0,1,0] op_sel_hi:[1,1,0]" % (P(tq(r)), P(tq(r))))
    else:
        for r in range(8):
            ops.append("v_fma_f32 v%d, v%d, v3, v2" % (tq(r), tq(r)))
    mul(tq(0), tq(0), tg(0), 8)
    for r in range(8):
        ops.append("v_exp_f32 v%d, v%d" % (tq(r), tq(r)))
    for r in range(8):
        ops.append("v_add_f32 v%d, 1.0, v%d" % (tq(r), tq(r)))
    for r in range(8):
        ops.append("v_rcp_f32 v%d, v%d" % (tq(r), tq(r)))
    mul(tg(0), tg(0), tq(0), 8)
    for r in range(0, 8, 2):
        ops.append("v_cvt_pk_bf16_f32 v%d, v%d, v%d" % (tp(r // 2), tg(r), tg(r + 1)))
    for r in range(0, 8, 2):
        ops.append("v_lshlrev_b32 v%d, 16, v%d" % (tg(r), tp(r // 2)))
        ops.append("v_and_b32 v%d, 0xffff0000, v%d" % (tg(r + 1), tp(r // 2)))
    mul(tg(0), tg(0), tu(0), 8)
    for r in range(0, 8, 2):
        ops.append("v_cvt_pk_bf16_f32 v%d, v%d, v%d" % (T + 32 + r // 2, tg(r), tg(r + 1)))
    ops.append(tile_store)
    return ops

def gen_k3(a):
    a.kstart("k3_kernel")
    a("s_cmp_ge_u32 s2, 256")
    a("s_cbranch_scc1 L_k3_exit")
    a.stamp_begin()
    a("s_load_dwordx2 s[6:7], s[0:1], 120")
    a("s_and_b32 s3, s2, 7")
    a("s_lshr_b32 s4, s2, 3")
    a("s_and_b32 s21, s3, 1")
    a("s_lshl_b32 s21, s21, 3")
    a("s_and_b32 s22, s4, 7")
    a("s_add_u32 s21, s21, s22")
    a("s_lshr_b32 s22, s3, 1")
    a("s_lshl_b32 s22, s22, 2")
    a("s_lshr_b32 s23, s4, 3")
    a("s_add_u32 s22, s22, s23")
    a("v_and_b32 v1, 63, v0")
    a("v_lshrrev_b32 v2, 6, v0")
    a("s_nop 0")
    a("v_readfirstlane_b32 s20, v2")
    a("v_lshlrev_b32 v6, 4, v1")
    a("s_and_b32 s18, s20, 3")
    a("s_lshr_b32 s19, s20, 2")
    a("s_mul_i32 s29, s20, 3584")
    a("s_mul_i32 s28, s21, %d", 7 * SLOT)
    a("s_add_u32 s28, s28, s29")
    a("s_add_u32 s28, s28, %d", WGU)
    a("s_waitcnt lgkmcnt(0)")
    a.srd(8, 6, WS_BYTES)
    vm = Trk()
    slot_addr = {0: 98304, 1: 126976, 2: 32768, 3: 65536, 4: 0, 5: 98304, 6: 126976}
    wlast = {}
    def wdma(t):
        seq = [["s_add_u32 s30, s29, %d" % slot_addr[t], "s_add_u32 s31, s28, %d" % (t * SLOT), "s_mov_b32 m0, s30", "s_nop 0",
                "buffer_load_dwordx4 v6, s[8:11], s31 offen lds"]]
        for q in range(1, 3):
            seq.append(["buffer_load_dwordx4 v6, s[8:11], s31 offen offset:%d lds" % (1024 * q)])
        seq.append(["s_mov_b32 exec_hi, 0", "buffer_load_dwordx4 v6, s[8:11], s31 offen offset:3072 lds", "s_mov_b32 exec_hi, -1", "s_nop 3"])
        return seq
    def emit_wdma(t):
        for g in wdma(t):
            for i in g:
                a(i)
                if i.startswith("buffer"):
                    vm.issue()
        wlast[t] = vm.n
    emit_wdma(0)
    emit_wdma(1)
    a("s_lshl_b32 s24, s22, 2")
    a("s_add_u32 s24, s24, s18")
    a("s_mul_i32 s24, s24, %d", SLOT)
    a("s_add_u32 s24, s24, %d", HT)
    a("s_lshl_b32 s25, s19, 12")
    a("s_add_u32 s26, s24, s25")
    a("s_lshl_b32 s27, s18, 13")
    a("s_add_u32 s27, s27, s25")
    hidx = []
    for c in range(3):
        a("s_mov_b32 m0, s27")
        a("s_add_u32 s27, s27, 32768")
        for n in range(4):
            a("buffer_load_dwordx4 v6, s[8:11], s26 offen offset:%d lds", 1024 * n)
            vm.issue()
        a("s_add_u32 s26, s26, 8192")
        hidx.append(vm.n)
    a("s_mul_i32 s32, s21, 896")
    a("s_add_u32 s32, s32, %d", CS)
    a("s_mov_b32 m0, %d", CSL)
    a("s_mov_b32 exec_hi, 0x00ffffff")
    a("buffer_load_dwordx4 v6, s[8:11], s32 offen lds")
    a("s_mov_b32 exec_hi, -1")
    vm.issue()
    def emit_chunk3():
        a("s_lshl_b32 s25, s19, 11")
        a("s_add_u32 s26, s24, s25")
        a("s_add_u32 s26, s26, 24576")
        a("s_lshl_b32 s27, s18, 13")
        a("s_add_u32 s27, s27, s25")
        a("s_mov_b32 m0, s27")
        a("s_nop 0")
        for n in range(2):
            a("buffer_load_dwordx4 v6, s[8:11], s26 offen offset:%d lds", 1024 * n)
            vm.issue()
        hidx.append(vm.n)
    a("v_and_b32 v3, 15, v1")
    a("v_lshrrev_b32 v4, 2, v3")
    a("v_lshlrev_b32 v4, 6, v4")
    a("v_bfe_u32 v5, v1, 4, 1")
    a("v_lshl_add_u32 v4, v5, 5, v4")
    a("v_bfe_u32 v5, v1, 1, 1")
    a("v_lshl_add_u32 v4, v5, 4, v4")
    a("v_and_b32 v5, 1, v1")
    a("v_lshl_add_u32 v4, v5, 3, v4")
    a("v_lshrrev_b32 v5, 5, v1")
    a("v_lshl_add_u32 v4, v5, 9, v4")
    a("s_lshl_b32 s26, s18, 13")
    a("v_add_u32 v5, s26, v4")
    a("v_add_u32 v7, 65536, v5")
    a("s_mov_b32 s36, 0x3f803f80")
    for k in range(8):
        a("v_mov_b32 v%d, 0", T + k)
    c0 = math.sqrt(2.0 / math.pi)
    L2E = math.log2(math.e)
    a("v_mov_b32 v2, %s", fl(-2 * L2E * c0))
    a("v_mov_b32 v3, %s", fl(-2 * L2E * c0 * 0.044715))
    a("v_lshrrev_b32 v12, 5, v1")
    a("v_lshlrev_b32 v12, 6, v12")
    a("s_lshl_b32 s33, s19, 7")
    a("s_add_u32 s33, s33, %d", CSL)
    a("v_add_u32 v12, s33, v12")
    a("s_lshl_b32 s41, s22, 2")
    a("s_add_u32 s41, s41, s18")
    a("s_mul_i32 s41, s41, 112")
    a("s_mul_i32 s42, s21, 7")
    a("s_add_u32 s41, s41, s42")
    a("s_add_u32 s41, s41, s19")
    a("s_lshl_b32 s41, s41, 10")
    a("s_add_u32 s41, s41, %d", ACT)
    WA = [11, 13, 14, 15]
    a("s_cmp_eq_u32 s19, 0")
    for r in range(4):
        a("s_mov_b32 s34, %d", slot_addr[2 * r])
        a("s_cselect_b32 s33, s34, %d", slot_addr[min(2 * r + 1, 6)])
        a("v_add_u32 v%d, s33, v6", WA[r])
    a.stamp()
    lg = Trk()
    PD = 4
    ridx = {}
    def rd(r, s):
        k = 28 * r + s
        a("ds_read_b128 v[%d:%d], v%d offset:%d", WB + 4 * (k % PD), WB + 4 * (k % PD) + 3, WA[r], 1024 * s)
        ridx[k] = lg.issue()
    def mfma(r, s):
        k = 28 * r + s
        a("s_waitcnt lgkmcnt(%d)", lg.need(ridx[k]))
        acc = ACC[r % 2]
        a("v_mfma_f32_32x32x16_bf16 v[%d:%d], v[%d:%d], v[%d:%d], %s", acc, acc + 15, WB + 4 * (k % PD), WB + 4 * (k % PD) + 3,
          HF + 4 * s, HF + 4 * s + 3, "0" if s == 0 else "v[%d:%d]" % (acc, acc + 15))
    def store_op(r):
        return "buffer_store_dwordx4 v[%d:%d], v6, s[8:11], s41 offen offset:%d" % (T + 32, T + 35, 2048 * (r % 2))
    state = {"pend": [], "cs": None, "dma": []}
    def sync(tiles):
        a("s_waitcnt vmcnt(%d)", vm.need(max(wlast[t] for t in tiles)))
        a("s_barrier")
    def dma_step():
        if state["dma"]:
            t, g = state["dma"].pop(0)
            for i in g:
                a(i)
                if i.startswith("buffer"):
                    vm.issue()
                    wlast[t] = vm.n
    def start_ep(r, pk=False):
        for q in range(4):
            a("ds_read_b128 v[%d:%d], v12 offset:%d", CSV + 4 * q, CSV + 4 * q + 3, 256 * r + 16 * q)
            state["cs"] = lg.issue()
        state["pend"] = epilogue_ops(ACC[r % 2], store_op(r), pk)
    def drain(n, r):
        if state["cs"] is not None:
            a("s_waitcnt lgkmcnt(%d)", lg.need(state["cs"]))
            state["cs"] = None
        for _ in range(min(n, len(state["pend"]))):
            i = state["pend"].pop(0)
            a(i)
            if i.startswith("buffer"):
                vm.issue()
                if r % 2 == 1:
                    a("s_add_u32 s41, s41, 4096")
    for c in range(4):
        a("s_waitcnt vmcnt(%d)", vm.need(hidx[c]))
        a("s_barrier")
        if c == 1:
            emit_chunk3()
        if c == 2:
            emit_wdma(2)
        if c == 3:
            emit_wdma(3)
        ns = 8 if c < 3 else 4
        for n in range(ns):
            s_ = 8 * c + n
            vb, off = {0: (5, 0), 1: (5, 32768), 2: (7, 0), 3: (5, 0)}[c]
            for jj in range(2):
                a("ds_read_b64_tr_b16 v[%d:%d], v%d offset:%d", HF + 4 * s_ + 2 * jj, HF + 4 * s_ + 2 * jj + 1, vb, off + 1024 * n + 256 * jj)
                lg.issue()
        for n in range(PD - 1):
            rd(0, 8 * c + n)
        a("s_waitcnt lgkmcnt(%d)", PD - 1)
        a("s_cmp_lg_u32 s19, 0")
        a("s_cbranch_scc1 L_k3_st1_%d", c)
        for half in range(2):
            if half:
                a("s_branch L_k3_st2_%d", c)
                a.label("L_k3_st1_%d" % c)
            r0 = 4 * (8 * c + half * ns // 2)
            for r in range(r0, r0 + 2 * ns):
                a("v_dot2_f32_bf16 v%d, v%d, s36, v%d", T + r % 4, HF + r, T + r % 4)
                a("v_dot2_f32_bf16 v%d, v%d, v%d, v%d", T + 4 + r % 4, HF + r, HF + r, T + 4 + r % 4)
        a.label("L_k3_st2_%d" % c)
        for n in range(ns):
            if n + PD - 1 < ns:
                rd(0, 8 * c + n + PD - 1)
            mfma(0, 8 * c + n)
        a.stamp()
    a("s_nop 3")
    a("v_add_f32 v%d, v%d, v%d", T, T, T + 1)
    a("v_add_f32 v%d, v%d, v%d", T + 2, T + 2, T + 3)
    a("v_add_f32 v%d, v%d, v%d", T + 4, T + 4, T + 5)
    a("v_add_f32 v%d, v%d, v%d", T + 6, T + 6, T + 7)
    a("v_add_f32 v%d, v%d, v%d", T, T, T + 2)
    a("v_add_f32 v%d, v%d, v%d", T + 1, T + 4, T + 6)
    a("s_lshl_b32 s33, s20, 9")
    a("s_add_u32 s33, s33, %d", STX)
    a("v_lshl_add_u32 v%d, v1, 3, s33", T + 8)
    a("ds_write_b64 v%d, v[%d:%d]", T + 8, T, T + 1)
    a("s_xor_b32 s33, s33, 2048")
    a("v_lshl_add_u32 v%d, v1, 3, s33", T + 8)
    a("s_waitcnt lgkmcnt(0)")
    sync([2, 3])
    a("ds_read_b64 v[%d:%d], v%d", T + 2, T + 3, T + 8)
    for n in range(PD - 1):
        rd(1, n)
    state["dma"] = [(4, g) for g in wdma(4)] + [(5, g) for g in wdma(5)] + [(6, g) for g in wdma(6)]
    a("s_waitcnt lgkmcnt(%d)", PD - 1)
    a("v_add_f32 v%d, v%d, v%d", T, T, T + 2)
    a("v_add_f32 v%d, v%d, v%d", T + 4, T + 1, T + 3)
    a("v_mov_b32 v%d, v%d", T + 1, T)
    a("v_mov_b32 v%d, v%d", T + 5, T + 4)
    a("s_nop 1")
    a("v_permlane32_swap_b32 v%d, v%d", T, T + 1)
    a("v_permlane32_swap_b32 v%d, v%d", T + 4, T + 5)
    a("s_nop 1")
    a("v_add_f32 v%d, v%d, v%d", T, T, T + 1)
    a("v_add_f32 v%d, v%d, v%d", T + 4, T + 4, T + 5)
    a("v_mul_f32 v%d, %s, v%d", T, fl(1.0 / 448), T)
    a("v_mul_f32 v%d, %s, v%d", T + 4, fl(1.0 / 448), T + 4)
    a("v_fma_f32 v%d, -v%d, v%d, v%d", T + 4, T, T, T + 4)
    a("v_max_f32 v%d, 0, v%d", T + 4, T + 4)
    ln_scalars(a, T, T + 4, 8, 9, T + 8)
    a("v_rcp_f32 v%d, v9", T + 9)
    a("v_sub_f32 v8, 0, v8")
    a("v_fma_f32 v%d, -v9, v%d, 1.0", T + 10, T + 9)
    a("v_fma_f32 v9, v%d, v%d, v%d", T + 10, T + 9, T + 9)
    a.stamp()
    def round_(r, nxt):
        for s in range(28):
            if s + PD - 1 < 28:
                rd(r, s + PD - 1)
            elif nxt:
                if s + PD - 1 == 28:
                    sync([t for t in (2 * r + 2, 2 * r + 3) if t < 7])
                rd(r + 1, s + PD - 1 - 28)
            mfma(r, s)
            if r == 2 and s == 2:
                a("s_lshr_b32 s33, s2, 3")
                a("s_lshl_b32 s33, s33, 3")
                a("s_add_u32 s33, s33, s20")
                a("s_mul_i32 s33, s33, 6272")
                a("s_add_u32 s33, s33, %d", WD)
                for q in range(7):
                    if q == 4:
                        a("s_add_u32 s33, s33, 4096")
                    if q == 6:
                        a("s_mov_b32 exec_hi, 0")
                        a("s_mov_b32 exec_lo, 0xff")
                    a("buffer_load_dwordx4 v[232:235], v6, s[8:11], s33 offen offset:%d", 1024 * (q % 4))
                    vm.issue()
                a("s_mov_b64 exec, -1")
                a("s_nop 3")
            if s % 2 == 0:
                dma_step()
            if s == 0:
                start_ep(r - 1)
            if s >= 2 and state["pend"]:
                drain(6 if s < 27 else 1000, r - 1)
    round_(1, True)
    a.stamp()
    round_(2, True)
    a.stamp()
    a("s_cmp_lg_u32 s19, 0")
    a("s_cbranch_scc1 L_k3_p1")
    sv = (lg.n, vm.n)
    round_(3, False)
    a.stamp()
    a("s_nop 7")
    start_ep(3, True)
    drain(1000, 3)
    a.stamp_end(101, "k3")
    a.endp()
    a.label("L_k3_p1")
    lg.n, vm.n = sv
    a("s_nop 7")
    start_ep(2, True)
    drain(1000, 2)
    a.endp()
    a.label("L_k3_exit")
    a("s_endpgm")
```

```python
from common import *
LDS = 65536 + 8192
VGPR = 256
PD = 8
def gen_k4(a):
    a.kstart("k4_kernel")
    a("s_cmp_ge_u32 s2, 224")
    a("s_cbranch_scc1 L_k4_exit")
    a.stamp_begin()
    a("s_load_dwordx2 s[6:7], s[0:1], 120")
    a("s_load_dwordx2 s[4:5], s[0:1], 104")
    a("s_and_b32 s3, s2, 7")
    a("s_lshr_b32 s16, s2, 3")
    a("s_and_b32 s21, s16, 3")
    a("s_lshl_b32 s3, s3, 2")
    a("s_add_u32 s21, s21, s3")
    a("s_lshr_b32 s22, s16, 2")
    a("v_and_b32 v1, 63, v0")
    a("v_lshrrev_b32 v2, 6, v0")
    a("s_nop 0")
    a("v_readfirstlane_b32 s20, v2")
    a("v_lshlrev_b32 v6, 4, v1")
    a("s_waitcnt lgkmcnt(0)")
    a.srd(8, 6, WS_BYTES)
    a.srd(12, 4, 2048 * 896)
    a("v_and_b32 v3, 31, v1")
    a("v_mul_u32_u24 v3, 896, v3")
    a("v_lshrrev_b32 v4, 5, v1")
    a("v_lshl_add_u32 v3, v4, 5, v3")
    a("s_lshr_b32 s23, s20, 1")
    a("s_lshl_b32 s24, s21, 1")
    a("s_add_u32 s24, s24, s23")
    a("s_mul_i32 s24, s24, %d", 32 * 896)
    a("s_and_b32 s23, s20, 1")
    a("s_lshl_b32 s25, s22, 1")
    a("s_add_u32 s25, s25, s23")
    a("s_lshl_b32 s25, s25, 6")
    a("s_add_u32 s24, s24, s25")
    a("s_lshr_b32 s23, s20, 1")
    a("s_lshl_b32 s25, s21, 1")
    a("s_add_u32 s25, s25, s23")
    a("s_mul_i32 s25, s25, 28672")
    a("s_and_b32 s23, s20, 1")
    a("s_lshl_b32 s32, s22, 1")
    a("s_add_u32 s32, s32, s23")
    a("s_lshl_b32 s32, s32, 11")
    a("s_add_u32 s25, s25, s32")
    a("s_add_u32 s25, s25, %d", HT)
    a("s_lshl_b32 s33, s20, 11")
    a("s_add_u32 s33, s33, 65536")
    a("s_mov_b32 m0, s33")
    a("s_nop 0")
    a("buffer_load_dwordx4 v6, s[8:11], s25 offen lds")
    a("buffer_load_dwordx4 v6, s[8:11], s25 offen offset:1024 lds")
    a("v_and_b32 v16, 15, v1")
    a("v_lshrrev_b32 v17, 2, v16")
    a("v_lshlrev_b32 v17, 6, v17")
    a("v_bfe_u32 v18, v1, 4, 1")
    a("v_lshl_add_u32 v17, v18, 5, v17")
    a("v_and_b32 v18, 3, v1")
    a("v_lshl_add_u32 v17, v18, 3, v17")
    a("v_lshrrev_b32 v18, 5, v1")
    a("v_lshl_add_u32 v17, v18, 10, v17")
    a("v_add_u32 v17, s33, v17")
    nv = 2
    a("s_mul_i32 s26, s20, 28")
    a("s_mul_i32 s27, s22, 224")
    a("s_add_u32 s27, s27, s26")
    a("s_lshl_b32 s27, s27, 10")
    a("s_add_u32 s28, s27, %d", WD)
    a("s_add_u32 s29, s28, %d", 112 * 1024)
    a("s_mul_i32 s27, s21, 224")
    a("s_add_u32 s27, s27, s26")
    a("s_lshl_b32 s27, s27, 10")
    a("s_add_u32 s30, s27, %d", ACT)
    a("s_add_u32 s31, s30, %d", 112 * 1024)
    FR = 96
    issued = []
    def ld(s):
        b = FR + 16 * (s % PD)
        order = (2, 0, 3, 1)
        for q in order:
            a("buffer_load_dwordx4 v[%d:%d], v6, s[8:11], s%d offen offset:%d", b + 4 * q, b + 4 * q + 3, 28 + q, 1024 * (s % 4))
            issued.append((s, q))
        if s % 4 == 3:
            for q in range(4):
                a("s_add_u32 s%d, s%d, 4096", 28 + q, 28 + q)
    for s in range(PD):
        ld(s)
    a.stamp()
    for s in range(28):
        if s in (1, 8, 16):
            a.stamp()
        b = FR + 16 * (s % PD)
        last = max(i for i, e in enumerate(issued) if e[0] == s)
        first2 = last - 2
        a("s_waitcnt vmcnt(%d)", len(issued) - 1 - first2)
        def mf(ta, tb):
            acc = 32 + 16 * (ta + 2 * tb)
            a("v_mfma_f32_32x32x16_bf16 v[%d:%d], v[%d:%d], v[%d:%d], %s", acc, acc + 15, b + 4 * ta, b + 4 * ta + 3,
              b + 8 + 4 * tb, b + 8 + 4 * tb + 3, "0" if s == 0 else "v[%d:%d]" % (acc, acc + 15))
        mf(0, 0)
        a("s_waitcnt vmcnt(%d)", len(issued) - 1 - (last - 1))
        mf(0, 1)
        a("s_waitcnt vmcnt(%d)", len(issued) - 1 - last)
        mf(1, 0)
        mf(1, 1)
        if s + PD < 28:
            ld(s + PD)
    a.stamp()
    a("s_lshl_b32 s26, s20, 14")
    a("v_add_u32 v7, s26, v6")
    a("s_nop 7")
    for tl in range(4):
        for q in range(4):
            a("ds_write_b128 v7, v[%d:%d] offset:%d", 32 + 16 * tl + 4 * q, 35 + 16 * tl + 4 * q, 4096 * tl + 1024 * q)
    a("s_waitcnt lgkmcnt(0)")
    a("s_barrier")
    a("s_lshl_b32 s26, s20, 12")
    a("v_add_u32 v7, s26, v6")
    for w in range(4):
        for q in range(4):
            a("ds_read_b128 v[%d:%d], v7 offset:%d", 32 + 16 * w + 4 * q, 35 + 16 * w + 4 * q, 16384 * w + 1024 * q)
    for q in range(4):
        a("ds_read_b64_tr_b16 v[%d:%d], v17 offset:%d", 8 + 2 * q, 9 + 2 * q, 256 * q)
    a("s_waitcnt lgkmcnt(0)")
    for r in range(16):
        a("v_add_f32 v%d, v%d, v%d", 32 + r, 32 + r, 48 + r)
        a("v_add_f32 v%d, v%d, v%d", 64 + r, 64 + r, 80 + r)
    for r in range(16):
        a("v_add_f32 v%d, v%d, v%d", 32 + r, 32 + r, 64 + r)
    for r in range(0, 16, 2):
        a("v_cvt_pk_bf16_f32 v%d, v%d, v%d", 48 + r // 2, 32 + r, 33 + r)
    for r in range(8):
        a("v_lshlrev_b32 v%d, 16, v%d", 32 + 2 * r, 48 + r)
        a("v_and_b32 v%d, 0xffff0000, v%d", 33 + 2 * r, 48 + r)
        a("v_lshlrev_b32 v%d, 16, v%d", 64 + 2 * r, 8 + r)
        a("v_and_b32 v%d, 0xffff0000, v%d", 65 + 2 * r, 8 + r)
    for r in range(16):
        a("v_add_f32 v%d, v%d, v%d", 32 + r, 32 + r, 64 + r)
    for r in range(0, 16, 2):
        a("v_cvt_pk_bf16_f32 v%d, v%d, v%d", 48 + r // 2, 32 + r, 33 + r)
    a("buffer_store_dwordx4 v[48:51], v3, s[12:15], s24 offen")
    a("buffer_store_dwordx4 v[52:55], v3, s[12:15], s24 offen offset:16")
    a.stamp_end(100, "k4")
    a.endp()
    a.label("L_k4_exit")
    a("s_endpgm")
```

```python
import sys
from common import *
import k1, k2
HDR = open('sequential_preLN__ssm_conv_s4__geglu_ffn__prompt.s.ref').read().split('; Override launch')[0]
stage = int(sys.argv[1]) if len(sys.argv) > 1 else 4
a = Asm()
a.prof = len(sys.argv) > 2 and sys.argv[2] == "prof"
OUT = sys.argv[3] if len(sys.argv) > 3 else 'sequential_preLN__ssm_conv_s4__geglu_ffn__prompt.s'
launches = ["; @launch kernel=k1_kernel grid=(744,1,1) block=(256,1,1) lds=53504",
            "; @launch kernel=k2_kernel grid=(448,1,1) block=(256,1,1) lds=38400"]
a.pv = 120
k1.gen_k1(a)
a.pv = 184
k2.gen_k2(a)
a.pv = 248
kds = kd("k1_kernel", 128) + kd("k2_kernel", 192)
if stage >= 3:
    import k3
    launches.append("; @launch kernel=k3_kernel grid=(256,1,1) block=(512,1,1) lds=%d" % k3.LDS)
    k3.gen_k3(a)
    kds += kd("k3_kernel", k3.VGPR)
if stage >= 4:
    import k4
    launches.append("; @launch kernel=k4_kernel grid=(224,1,1) block=(256,1,1) lds=%d" % k4.LDS)
    k4.gen_k4(a)
    kds += kd("k4_kernel", k4.VGPR)
out = HDR + "\n".join(launches) + "\n" + '.amdgcn_target "amdgcn-amd-amdhsa--gfx950"\n.text\n' + a.text()
out += '.section .rodata,"a"\n.p2align 6\n' + kds
open(OUT, 'w').write(out)
print(len(out))
```

```python
import struct
def f2u(x):
    return struct.unpack('<I', struct.pack('<f', x))[0]
def fl(x):
    return "0x%08x" % f2u(x)

UR, XT, KS, WGU, CS, WD, HT, HR, ACT = 0x0, 0x200000, 0x400000, 0x800000, 0xB80000, 0xC00000, 0xE00000, 0x1000000, 0x1200000
WS_BYTES = 0x1900000
KSTR = 8704
KO = 4352

class Asm:
    def __init__(self):
        self.L = []
    pv = 248
    sc1 = False
    def __call__(self, s, *a):
        if self.sc1 and s.startswith("buffer_store_dword") and "s[12:15], s24" not in s:
            s = s + " sc0 sc1"
        if "%(p" in s:
            for k in range(4):
                s = s.replace("%%(p%d)d" % k, str(self.pv + k))
        self.L.append("    " + (s % a if a else s))
    def label(self, s):
        self.L.append(s + ":")
    def raw(self, s):
        self.L.append(s)
    def srd(self, b, p, n):
        self("s_mov_b32 s%d, s%d", b, p)
        self("s_and_b32 s%d, s%d, 0xffff", b + 1, p + 1)
        self("s_mov_b32 s%d, 0x%x", b + 2, n)
        self("s_mov_b32 s%d, 0x20000", b + 3)
    def kstart(self, name):
        self.raw(".globl %s" % name)
        self.raw(".p2align 8")
        self.raw(".type %s,@function" % name)
        self.label(name)
        self.kidx = getattr(self, "kidx", -1) + 1
        if self.prof:
            self("s_memrealtime s[96:97]")
    prof = False
    nst = 0
    def stamp(self):
        if not self.prof:
            return
        self("s_memtime s[%d:%d]", 60 + 2 * self.nst, 61 + 2 * self.nst)
        self("s_waitcnt lgkmcnt(0)")
        self.nst += 1
    def stamp_begin(self):
        self.nst = 0
        if self.prof:
            self("s_memrealtime s[56:57]")
        self.stamp()
    def stamp_end(self, sel, tag):
        if not self.prof:
            return
        self.stamp()
        self("s_memrealtime s[58:59]")
        self("s_load_dwordx2 s[54:55], s[0:1], 112")
        self("s_waitcnt vmcnt(0) lgkmcnt(0)")
        self("s_cmp_lg_u32 s2, %d", sel)
        self("s_cbranch_scc1 L_st_%s", tag)
        self("v_cmp_eq_u32 vcc, 0, v0")
        self("s_and_saveexec_b64 s[52:53], vcc")
        self("s_cbranch_execz L_st_%s", tag)
        self("v_mov_b32 v%(p1)d, 0")
        for i in range(2 + self.nst):
            self("v_mov_b32 v%(p0)d, s%d", 56 + 2 * i)
            self("global_store_dword v%(p1)d, v%(p0)d, s[54:55] offset:%d", 4 * i)
        self.label("L_st_%s" % tag)
    nend = 0
    def endp(self):
        if self.prof:
            self.nend += 1
            self("s_mov_b64 exec, -1")
            self("s_waitcnt vmcnt(0) lgkmcnt(0)")
            self("s_memrealtime s[98:99]")
            self("s_load_dwordx2 s[54:55], s[0:1], 120")
            self("s_waitcnt lgkmcnt(0)")
            self("v_cmp_eq_u32 vcc, 0, v0")
            self("s_and_saveexec_b64 s[52:53], vcc")
            self("s_cbranch_execz L_end_%d", self.nend)
            self("s_lshl_b32 s53, s2, 3")
            self("s_add_u32 s53, s53, 0x%x", 0x1A00000 + self.kidx * 0x10000)
            self("v_mov_b32 v%(p1)d, s53")
            self("v_mov_b32 v%(p2)d, s96")
            self("v_mov_b32 v%(p3)d, s98")
            self("global_store_dwordx2 v%(p1)d, v[%(p2)d:%(p3)d], s[54:55]")
            self.label("L_end_%d" % self.nend)
        self("s_endpgm")
    def text(self):
        return "\n".join(self.L) + "\n"

def vr(b, n=1):
    return "v%d" % b if n == 1 else "v[%d:%d]" % (b, b + n - 1)
def sr(b, n=1):
    return "s%d" % b if n == 1 else "s[%d:%d]" % (b, b + n - 1)

def kd(name, vgpr, sgpr=102, agpr=0):
    acc = (vgpr + 3) // 4 * 4
    nfv = acc + agpr if agpr else vgpr
    return """.amdhsa_kernel %s
  .amdhsa_next_free_vgpr %d
  .amdhsa_next_free_sgpr %d
  .amdhsa_accum_offset %d
  .amdhsa_group_segment_fixed_size 0
  .amdhsa_kernarg_size 128
  .amdhsa_user_sgpr_count 2
  .amdhsa_user_sgpr_kernarg_segment_ptr 1
  .amdhsa_system_sgpr_workgroup_id_x 1
.end_amdhsa_kernel
""" % (name, nfv, sgpr, acc)
```

```python
from common import *
import math
LOG2E = math.log2(math.e)

def dpp_sum16(a, v, t):
    for mode in ("quad_perm:[1,0,3,2]", "quad_perm:[2,3,0,1]", "row_half_mirror", "row_mirror"):
        a("s_nop 1")
        a("v_add_f32_dpp v%d, v%d, v%d %s row_mask:0xf bank_mask:0xf", t, v, v, mode)
        a("v_mov_b32 v%d, v%d", v, t)

def ln_scalars(a, vmean, vvar, vm, vs, vt):
    a("v_cvt_pk_bf16_f32 v%d, v%d, v%d", vt, vmean, vvar)
    a("v_lshlrev_b32 v%d, 16, v%d", vm, vt)
    a("v_and_b32 v%d, 0xffff0000, v%d", vs, vt)
    a("v_add_f32 v%d, %s, v%d", vs, fl(1e-5), vs)
    a("v_cvt_pk_bf16_f32 v%d, v%d, v%d", vt, vs, vs)
    a("v_and_b32 v%d, 0xffff0000, v%d", vs, vt)
    a("v_sqrt_f32 v%d, v%d", vs, vs)
    a("s_nop 0")
    a("v_cvt_pk_bf16_f32 v%d, v%d, v%d", vt, vs, vs)
    a("v_and_b32 v%d, 0xffff0000, v%d", vs, vt)

def gen_ln1(a):
    a("s_load_dwordx2 s[4:5], s[0:1], 0")
    a("s_load_dwordx2 s[6:7], s[0:1], 120")
    a("s_lshl_b32 s20, s3, 4")
    a("v_lshrrev_b32 v1, 4, v0")
    a("v_and_b32 v2, 15, v0")
    a("v_add_u32 v3, s20, v1")
    a("s_movk_i32 s21, 896")
    a("v_mul_lo_u32 v3, v3, s21")
    a("v_lshl_add_u32 v3, v2, 3, v3")
    a("s_waitcnt lgkmcnt(0)")
    a.srd(8, 4, 2048 * 896)
    a.srd(12, 6, WS_BYTES)
    for i in range(7):
        a("buffer_load_dwordx2 v[%d:%d], v3, s[8:11], 0 offen offset:%d", 10 + 2 * i, 11 + 2 * i, 128 * i)
    a("s_movk_i32 s21, 144")
    a("v_mul_lo_u32 v4, v2, s21")
    a("v_sub_u32 v5, 15, v1")
    a("v_lshl_add_u32 v5, v5, 1, v4")
    a("v_lshl_add_u32 v6, v1, 1, v4")
    a("v_add_u32 v6, 16128, v6")
    a("s_waitcnt vmcnt(0)")
    for i in range(14):
        a("v_lshlrev_b32 v%d, 16, v%d", 30 + 2 * i, 10 + i)
        a("v_and_b32 v%d, 0xffff0000, v%d", 31 + 2 * i, 10 + i)
    a("v_add_f32 v60, v30, v31")
    a("v_add_f32 v61, v32, v33")
    for i in range(4, 28, 2):
        a("v_add_f32 v60, v60, v%d", 30 + i)
        a("v_add_f32 v61, v61, v%d", 31 + i)
    a("v_add_f32 v60, v60, v61")
    dpp_sum16(a, 60, 62)
    a("v_mul_f32 v60, %s, v60", fl(1.0 / 448))
    a("v_mov_b32 v63, 0")
    a("v_mov_b32 v64, 0")
    for i in range(0, 28, 2):
        a("v_sub_f32 v61, v%d, v60", 30 + i)
        a("v_sub_f32 v62, v%d, v60", 31 + i)
        a("v_fmac_f32 v63, v61, v61")
        a("v_fmac_f32 v64, v62, v62")
    a("v_add_f32 v63, v63, v64")
    dpp_sum16(a, 63, 62)
    a("v_mul_f32 v63, %s, v63", fl(1.0 / 448))
    ln_scalars(a, 60, 63, 64, 65, 62)
    a("v_rcp_f32 v66, v65")
    for i in range(14):
        x0, x1 = 30 + 2 * i, 31 + 2 * i
        a("v_sub_f32 v%d, v%d, v64", x0, x0)
        a("v_sub_f32 v%d, v%d, v64", x1, x1)
        a("v_cvt_pk_bf16_f32 v67, v%d, v%d", x0, x1)
        a("v_lshlrev_b32 v%d, 16, v67", x0)
        a("v_and_b32 v%d, 0xffff0000, v67", x1)
        a("v_mul_f32 v68, v%d, v66", x0)
        a("v_mul_f32 v69, v%d, v66", x1)
        a("v_fma_f32 v70, -v68, v65, v%d", x0)
        a("v_fma_f32 v71, -v69, v65, v%d", x1)
        a("v_fmac_f32 v68, v70, v66")
        a("v_fmac_f32 v69, v71, v66")
        a("v_cvt_pk_bf16_f32 v%d, v68, v69", 72 + i)
    for i in range(7):
        for j in range(4):
            op = "ds_write_b16" if j % 2 == 0 else "ds_write_b16_d16_hi"
            off = 2304 * i + 36 * j
            a("%s v5, v%d offset:%d", op, 72 + 2 * i + j // 2, off)
            a("%s v6, v%d offset:%d", op, 10 + 2 * i + j // 2, off)
    a("s_waitcnt lgkmcnt(0)")
    a("s_barrier")
    a("v_and_b32 v1, 127, v0")
    a("v_lshrrev_b32 v2, 7, v0")
    a("v_lshrrev_b32 v3, 1, v1")
    a("v_and_b32 v4, 1, v1")
    a("v_mul_u32_u24 v5, 36, v3")
    a("v_lshl_add_u32 v5, v4, 4, v5")
    a("v_mul_u32_u24 v6, 16128, v2")
    a("v_add_u32 v5, v5, v6")
    a("v_lshlrev_b32 v7, 12, v3")
    a("v_lshl_add_u32 v7, v4, 4, v7")
    a("s_nop 0")
    a("v_readfirstlane_b32 s22, v2")
    a("s_lshl_b32 s23, s20, 1")
    a("s_sub_u32 s24, %d, s23", UR + 4064)
    a("s_add_u32 s25, s23, %d", XT)
    a("s_cmp_eq_u32 s22, 0")
    a("s_cselect_b32 s24, s24, s25")
    for k in range(7):
        for j in range(4):
            a("ds_read_b32 v%d, v5 offset:%d", 10 + 4 * k + j, 2304 * k + 4 * j)
    for k in range(7):
        a("s_waitcnt lgkmcnt(%d)", min(15, 4 * (6 - k)))
        a("buffer_store_dwordx4 v[%d:%d], v7, s[12:15], s24 offen", 10 + 4 * k, 13 + 4 * k)
        a("s_add_u32 s24, s24, %d", 64 * 4096)
    a.endp()

def cmul(a, dr, di, xr, xi, yr, yi):
    assert di == dr + 1 and xi == xr + 1 and yi == yr + 1 and dr % 2 == 0 and xr % 2 == 0 and yr % 2 == 0
    a("v_pk_mul_f32 v[%d:%d], v[%d:%d], v[%d:%d] op_sel:[0,0] op_sel_hi:[0,1]", dr, di, xr, xi, yr, yi)
    a("v_pk_fma_f32 v[%d:%d], v[%d:%d], v[%d:%d], v[%d:%d] op_sel:[1,1,0] op_sel_hi:[1,0,1] neg_lo:[1,0,0]", dr, di, xr, xi, yr, yi, dr, di)

def cexp(a, dr, di, L, va2, vbr, t0, t1):
    a("v_mul_f32 v%d, %s, v%d", t0, fl(float(L)), va2)
    a("v_mul_f32 v%d, %s, v%d", t1, fl(float(L)), vbr)
    a("v_exp_f32 v%d, v%d", t0, t0)
    a("v_fract_f32 v%d, v%d", t1, t1)
    a("v_cos_f32 v%d, v%d", dr, t1)
    a("v_sin_f32 v%d, v%d", di, t1)
    a("s_nop 0")
    a("v_mul_f32 v%d, v%d, v%d", dr, dr, t0)
    a("v_mul_f32 v%d, v%d, v%d", di, di, t0)

def gen_kgen(a, pre, TB):
    WR = 52 * 256
    CROW = 4 * WR
    a.stamp_begin()
    a("s_load_dwordx4 s[4:7], s[0:1], 8")
    a("s_load_dwordx4 s[8:11], s[0:1], 24")
    a("s_load_dwordx4 s[12:15], s[0:1], 40")
    a("s_load_dwordx2 s[16:17], s[0:1], 56")
    a("s_load_dwordx2 s[18:19], s[0:1], 120")
    a("s_load_dwordx2 s[30:31], s[0:1], 64")
    a("s_lshl_b32 s3, s2, 9")
    a("v_lshl_add_u32 v1, v0, 1, s3")
    a("s_lshl_b32 s3, s2, 1")
    a("v_mov_b32 v2, s3")
    a("s_waitcnt lgkmcnt(0)")
    for k in range(6):
        a("global_load_ushort v%d, v1, s[%d:%d]", 10 + k, 4 + 2 * k, 5 + 2 * k)
    a("global_load_ushort v16, v2, s[16:17]")
    a.srd(20, 18, WS_BYTES)
    pre(a)
    a("v_and_b32 v3, 63, v0")
    a("v_lshrrev_b32 v4, 6, v0")
    a("v_mul_u32_u24 v5, %d, v4", WR)
    for k in range(16):
        a("v_xor_b32 v6, %d, v3", k << 2)
        a("v_lshl_add_u32 v%d, v6, 2, v5", 100 + k)
    a("s_waitcnt vmcnt(%d)", pre.nvm)
    a.stamp()
    for k in range(7):
        a("v_lshlrev_b32 v%d, 16, v%d", 10 + k, 10 + k)
    a("v_mul_f32 v16, %s, v16", fl(LOG2E))
    a("v_exp_f32 v16, v16")
    a("s_nop 0")
    a("v_cvt_pk_bf16_f32 v16, v16, v16")
    a("v_and_b32 v16, 0xffff0000, v16")
    a("v_mul_f32 v17, v16, v10")
    a("v_mul_f32 v18, v16, v11")
    a("v_mul_f32 v17, %s, v17", fl(LOG2E))
    a("v_mul_f32 v18, %s, v18", fl(1.0 / (2 * math.pi)))
    a("v_mul_f32 v12, v16, v12")
    a("v_mul_f32 v13, v16, v13")
    cmul(a, 20, 21, 14, 15, 12, 13)
    cexp(a, 22, 23, 1, 17, 18, 8, 9)
    cexp(a, 24, 25, 8, 17, 18, 8, 9)
    cexp(a, 30, 31, 256, 17, 18, 8, 9)
    cexp(a, 32, 33, 512, 17, 18, 8, 9)
    cexp(a, 36, 37, 1024, 17, 18, 8, 9)
    cexp(a, 44, 45, 2048, 17, 18, 8, 9)
    cmul(a, 34, 35, 30, 31, 32, 33)
    cmul(a, 38, 39, 36, 37, 30, 31)
    cmul(a, 40, 41, 36, 37, 32, 33)
    cmul(a, 42, 43, 36, 37, 34, 35)
    Q = {m: 28 + 2 * m for m in range(1, 9)}
    def wr_x(row, r):
        a("v_cvt_pk_bf16_f32 v7, v%d, -v%d", r, r + 1)
        a("ds_write_b32 v%d, v7 offset:%d", 100 + (row & 15), row * 256)
    def wr_y(j, r):
        row = 20 + j
        a("v_cvt_pk_bf16_f32 v6, v%d, v%d", r, r + 1)
        a("ds_write_b32 v%d, v6 offset:%d", 100 + (row & 15), row * 256)
    a("v_mov_b32 v50, v20")
    a("v_mov_b32 v51, v21")
    a("v_mov_b32 v70, 0x3f80")
    a("v_lshlrev_b32 v71, 2, v3")
    a("ds_write_b32 v71, v70 offset:%d", CROW)
    wr_y(1, 24)
    cur = 24
    ytasks = []
    xs = []
    for e in range(1, 8):
        xs.append(("z", e))
    for e in range(4):
        xs.append(("q", 8 + e, 1, 2 * e))
    for (row, m, e) in ((12, 2, 0), (13, 2, 4), (14, 3, 0), (15, 3, 4), (16, 4, 0), (17, 5, 0), (18, 6, 0), (19, 7, 0), (20, 8, 0)):
        xs.append(("q", row, m, e))
    wr_x(0, 50)
    for j in range(2, 32):
        nxt = 70 if cur != 70 else 72
        cmul(a, nxt, nxt + 1, cur, cur + 1, 24, 25)
        wr_y(j, nxt)
        cur = nxt
        if xs:
            t = xs.pop(0)
            if t[0] == "z":
                e = t[1]
                cmul(a, 50 + 2 * e, 51 + 2 * e, 48 + 2 * e, 49 + 2 * e, 22, 23)
                wr_x(e, 50 + 2 * e)
            else:
                _, row, m, e = t
                cmul(a, 74, 75, Q[m], Q[m] + 1, 50 + 2 * e, 51 + 2 * e)
                wr_x(row, 74)
    assert not xs
    a.stamp()
    a("v_and_b32 v6, 31, v3")
    a("v_lshrrev_b32 v7, 5, v3")
    a("v_and_b32 v8, 15, v6")
    a("v_xor_b32 v8, v8, v7")
    a("v_lshlrev_b32 v8, 4, v8")
    a("v_lshl_add_u32 v8, v6, 8, v8")
    a("v_add_u32 v8, v8, v5")
    a("v_add_u32 v9, 20, v6")
    a("v_and_b32 v10, 15, v9")
    a("v_xor_b32 v10, v10, v7")
    a("v_lshlrev_b32 v10, 4, v10")
    a("v_lshl_add_u32 v10, v9, 8, v10")
    a("v_add_u32 v10, v10, v5")
    a("v_cmp_eq_u32 vcc, 0, v6")
    a("v_mov_b32 v9, %d", CROW)
    a("s_nop 0")
    a("v_cndmask_b32 v10, v10, v9, vcc")
    a("s_waitcnt lgkmcnt(0)")
    for s in range(8):
        a("v_xor_b32 v11, %d, v8", 32 * s)
        a("v_xor_b32 v12, %d, v10", 32 * s)
        a("ds_read_b128 v[%d:%d], v11", 16 + 8 * s, 19 + 8 * s)
        a("ds_read_b128 v[%d:%d], v12", 20 + 8 * s, 23 + 8 * s)
    for s in range(8):
        a("s_waitcnt lgkmcnt(%d)", 2 * (7 - s))
        a("v_mfma_f32_32x32x16_bf16 v[80:95], v[%d:%d], v[%d:%d], %s", 16 + 8 * s, 19 + 8 * s, 20 + 8 * s, 23 + 8 * s,
          "0" if s == 0 else "v[80:95]")
    a("v_lshl_add_u32 v11, v3, 4, v5")
    a("s_nop 15")
    for q in range(4):
        a("ds_write_b128 v11, v[%d:%d] offset:%d", 80 + 4 * q, 83 + 4 * q, 1024 * q)
    a("s_waitcnt lgkmcnt(0)")
    a("s_barrier")
    a("v_lshlrev_b32 v11, 4, v0")
    for w in range(4):
        a("ds_read_b128 v[%d:%d], v11 offset:%d", 80 + 4 * w, 83 + 4 * w, WR * w)
    a("s_waitcnt lgkmcnt(0)")
    for j in range(4):
        a("v_add_f32 v%d, v%d, v%d", 80 + j, 80 + j, 84 + j)
        a("v_add_f32 v%d, v%d, v%d", 88 + j, 88 + j, 92 + j)
    for j in range(4):
        a("v_add_f32 v%d, v%d, v%d", 80 + j, 80 + j, 88 + j)
    a("v_readfirstlane_b32 s27, v4")
    a("v_and_b32 v6, 31, v3")
    a("v_lshrrev_b32 v7, 5, v3")
    a("v_cmp_eq_u32 vcc, 1, v7")
    a("s_cmp_eq_u32 s27, 0")
    a("s_cbranch_scc1 L_kg_c0")
    a("s_cmp_eq_u32 s27, 1")
    a("s_cbranch_scc1 L_kg_c1")
    a("s_cmp_eq_u32 s27, 2")
    a("s_cbranch_scc1 L_kg_c2")
    a("s_branch L_kg_cend")
    a.label("L_kg_c0")
    a("v_lshlrev_b32 v8, 3, v6")
    a("v_lshl_add_u32 v8, v7, 2, v8")
    a("v_lshlrev_b32 v8, 2, v8")
    for e in range(4):
        a("ds_write_b32 v8, v%d offset:%d", 80 + e, TB + 4 * e)
    a("s_branch L_kg_cend")
    a.label("L_kg_c1")
    a("v_lshlrev_b32 v8, 4, v6")
    a("v_lshlrev_b32 v9, 3, v6")
    a("v_add_u32 v8, %d, v8", 256 * 4)
    a("v_add_u32 v9, %d, v9", 384 * 4)
    a("v_add_u32 v10, 8, v8")
    a("v_add_u32 v12, 256, v9")
    a("v_cndmask_b32 v8, v8, v9, vcc")
    a("v_cndmask_b32 v10, v10, v12, vcc")
    a("ds_write_b32 v8, v80 offset:%d", TB)
    a("ds_write_b32 v8, v81 offset:%d", TB + 4)
    a("ds_write_b32 v10, v82 offset:%d", TB)
    a("ds_write_b32 v10, v83 offset:%d", TB + 4)
    a("s_branch L_kg_cend")
    a.label("L_kg_c2")
    a("v_lshlrev_b32 v8, 2, v6")
    a("v_add_u32 v8, %d, v8", 512 * 4)
    a("v_lshlrev_b32 v9, 2, v6")
    a("v_add_u32 v9, %d, v9", 640 * 4)
    a("v_cndmask_b32 v8, v8, v9, vcc")
    a("v_mov_b32 v9, 128")
    a("v_mov_b32 v10, 512")
    a("v_cndmask_b32 v9, v9, v10, vcc")
    for e in range(4):
        a("ds_write_b32 v8, v%d offset:%d", 80 + e, TB)
        if e < 3:
            a("v_add_u32 v8, v8, v9")
    a.label("L_kg_cend")
    a("s_waitcnt lgkmcnt(0)")
    a("s_barrier")
    a.stamp()

def gen_expand(a, TB):
    a("v_add_u32 v1, 1, v0")
    a("s_mul_i32 s24, s2, %d", KSTR)
    a("s_add_u32 s24, s24, %d", KS)
    a("s_add_u32 s25, s24, %d", KO)
    a("s_mov_b32 s26, 0")
    a.label("L_kg_exp")
    a("v_lshlrev_b32 v2, 3, v1")
    a("v_subrev_u32 v2, 15, v2")
    for k in range(9):
        t = 20 + 8 * k
        a("v_add_u32 v%d, %d, v2", t, k)
        a("v_max_i32 v%d, 0, v%d", t + 1, t)
        a("v_cvt_f32_u32 v%d, v%d", t + 2, t + 1)
        a("v_cvt_pk_bf16_f32 v%d, v%d, v%d", t + 2, t + 2, t + 2)
        a("v_lshrrev_b32 v%d, 16, v%d", t + 2, t + 2)
        a("v_subrev_u32 v%d, 17024, v%d", t + 2, t + 2)
        a("v_min_u32 v%d, 127, v%d", t + 1, t + 1)
        a("v_max_i32 v%d, v%d, v%d", t + 2, t + 2, t + 1)
        a("v_lshlrev_b32 v%d, 2, v%d", t + 2, t + 2)
        a("ds_read_b32 v%d, v%d offset:%d", t + 7, t + 2, TB)
    a("s_waitcnt lgkmcnt(0)")
    for k in range(9):
        t = 20 + 8 * k
        a("v_cmp_le_i32 vcc, 0, v%d", t)
        a("s_nop 1")
        a("v_cndmask_b32 v%d, 0, v%d, vcc", t + 7, t + 7)
    V = [27 + 8 * k for k in range(9)]
    for k in range(4):
        a("v_cvt_pk_bf16_f32 v%d, v%d, v%d", 100 + k, V[2 * k], V[2 * k + 1])
        a("v_cvt_pk_bf16_f32 v%d, v%d, v%d", 104 + k, V[2 * k + 1], V[2 * k + 2])
    a("v_lshlrev_b32 v3, 4, v1")
    a("buffer_store_dwordx4 v[100:103], v3, s[20:23], s24 offen")
    a("buffer_store_dwordx4 v[104:107], v3, s[20:23], s25 offen")
    a("v_cmp_eq_u32 vcc, 0, v0")
    a("s_and_saveexec_b64 s[28:29], vcc")
    a("s_cbranch_execz L_kg_done")
    for k in range(4):
        a("v_mov_b32 v%d, 0", 108 + k)
    a("v_mov_b32 v3, 0")
    a("buffer_store_dwordx4 v[108:111], v3, s[20:23], s24 offen")
    a("buffer_store_dwordx4 v[108:111], v3, s[20:23], s25 offen")
    a("ds_read_b64 v[112:113], v3 offset:%d", TB + 638 * 4)
    a("ds_read_b32 v114, v3 offset:%d", TB + 640 * 4)
    a("s_waitcnt lgkmcnt(0)")
    a("v_cvt_pk_bf16_f32 v20, v113, v113")
    a("v_cvt_pk_bf16_f32 v21, v113, v114")
    a("v_cvt_pk_bf16_f32 v22, v114, v114")
    a("v_mov_b32 v23, v22")
    a("v_mov_b32 v24, v20")
    a("v_mov_b32 v25, v22")
    a("v_mov_b32 v26, v22")
    a("v_mov_b32 v27, v22")
    a("v_mov_b32 v3, %d", 257 * 16)
    a("buffer_store_dwordx4 v[20:23], v3, s[20:23], s24 offen")
    a("buffer_store_dwordx4 v[24:27], v3, s[20:23], s25 offen")
    a.label("L_kg_done")
    a("s_mov_b64 exec, -1")
    a.stamp_end(100, "kg")
    a.endp()

def gen_k1(a):
    import k2
    a.kstart("k1_kernel")
    a("s_cmp_ge_u32 s2, 744")
    a("s_cbranch_scc1 L_k1_exit")
    a("s_cmp_lt_u32 s2, 448")
    a("s_cbranch_scc1 L_k1_kgen")
    a("s_cmp_lt_u32 s2, 576")
    a("s_cbranch_scc1 L_k1_ln1")
    a("s_sub_u32 s3, s2, 576")
    k2.gen_wprep(a)
    a.label("L_k1_ln1")
    a("s_sub_u32 s3, s2, 448")
    gen_ln1(a)
    a.label("L_k1_kgen")
    class Pre:
        nvm = 0
        def __call__(self, a):
            pass
    gen_kgen(a, Pre(), 4096)
    gen_expand(a, 4096)
    a.label("L_k1_exit")
    a("s_endpgm")
```

```python
from common import *
from k1 import ln_scalars
import math
SLOT = 28672
CSL = 155648
STX = 159744
LDS = STX + 4096
VGPR = 256
HF = 16
ACC = [128, 144]
WB = 160
CSV = 176
T = 192

class Trk:
    def __init__(self):
        self.n = 0
    def issue(self):
        self.n += 1
        return self.n
    def need(self, idx):
        return self.n - idx

def epilogue_ops(acc, tile_store, pk):
    ops = []
    g = acc
    u = acc + 8
    tq = T + 16
    P = lambda r: "v[%d:%d]" % (r, r + 1)
    def mul(d, x, y, n):
        if pk:
            for r in range(0, n, 2):
                ops.append("v_pk_mul_f32 %s, %s, %s" % (P(d + r), P(x + r), P(y + r)))
        else:
            for r in range(n):
                ops.append("v_mul_f32 v%d, v%d, v%d" % (d + r, x + r, y + r))
    if pk:
        for r in range(0, 16, 2):
            ops.append("v_pk_fma_f32 %s, v[8:9], %s, %s op_sel:[0,0,0] op_sel_hi:[0,1,1]" % (P(acc + r), P(CSV + r), P(acc + r)))
        for r in range(0, 16, 2):
            ops.append("v_pk_mul_f32 %s, v[8:9], %s op_sel:[1,0] op_sel_hi:[1,1]" % (P(acc + r), P(acc + r)))
    else:
        for r in range(16):
            ops.append("v_fma_f32 v%d, v8, v%d, v%d" % (acc + r, CSV + r, acc + r))
        for r in range(16):
            ops.append("v_mul_f32 v%d, v9, v%d" % (acc + r, acc + r))
    mul(tq, g, g, 8)
    if pk:
        for r in range(0, 8, 2):
            ops.append("v_pk_fma_f32 %s, %s, v[2:3], v[2:3] op_sel:[0,1,0] op_sel_hi:[1,1,0]" % (P(tq + r), P(tq + r)))
    else:
        for r in range(8):
            ops.append("v_fma_f32 v%d, v%d, v3, v2" % (tq + r, tq + r))
    mul(tq, tq, g, 8)
    for r in range(8):
        ops.append("v_exp_f32 v%d, v%d" % (tq + r, tq + r))
    mul(g, g, u, 8)
    for r in range(8):
        ops.append("v_add_f32 v%d, 1.0, v%d" % (tq + r, tq + r))
    for r in range(8):
        ops.append("v_rcp_f32 v%d, v%d" % (tq + r, tq + r))
    mul(g, g, tq, 8)
    for r in range(0, 8, 2):
        ops.append("v_cvt_pk_bf16_f32 v%d, v%d, v%d" % (T + 32 + r // 2, g + r, g + r + 1))
    ops.append(tile_store)
    return ops

def gen_k3(a):
    a.kstart("k3_kernel")
    a("s_cmp_ge_u32 s2, 256")
    a("s_cbranch_scc1 L_k3_exit")
    a.stamp_begin()
    a("s_load_dwordx2 s[6:7], s[0:1], 120")
    a("s_and_b32 s3, s2, 7")
    a("s_lshr_b32 s4, s2, 3")
    a("s_and_b32 s21, s3, 1")
    a("s_lshl_b32 s21, s21, 3")
    a("s_and_b32 s22, s4, 7")
    a("s_add_u32 s21, s21, s22")
    a("s_lshr_b32 s22, s3, 1")
    a("s_lshl_b32 s22, s22, 2")
    a("s_lshr_b32 s23, s4, 3")
    a("s_add_u32 s22, s22, s23")
    a("v_and_b32 v1, 63, v0")
    a("v_lshrrev_b32 v2, 6, v0")
    a("s_nop 0")
    a("v_readfirstlane_b32 s20, v2")
    a("v_lshlrev_b32 v6, 4, v1")
    a("s_and_b32 s18, s20, 3")
    a("s_lshr_b32 s19, s20, 2")
    a("s_mul_i32 s29, s20, 3584")
    a("s_mul_i32 s28, s21, %d", 7 * SLOT)
    a("s_add_u32 s28, s28, s29")
    a("s_add_u32 s28, s28, %d", WGU)
    a("s_waitcnt lgkmcnt(0)")
    a.srd(8, 6, WS_BYTES)
    vm = Trk()
    slot_addr = {0: 98304, 1: 126976, 2: 32768, 3: 65536, 4: 0, 5: 98304, 6: 126976}
    wlast = {}
    def wdma(t):
        seq = [["s_add_u32 s30, s29, %d" % slot_addr[t], "s_add_u32 s31, s28, %d" % (t * SLOT), "s_mov_b32 m0, s30", "s_nop 0",
                "buffer_load_dwordx4 v6, s[8:11], s31 offen lds"]]
        for q in range(1, 3):
            seq.append(["buffer_load_dwordx4 v6, s[8:11], s31 offen offset:%d lds" % (1024 * q)])
        seq.append(["s_mov_b32 exec_hi, 0", "buffer_load_dwordx4 v6, s[8:11], s31 offen offset:3072 lds", "s_mov_b32 exec_hi, -1", "s_nop 3"])
        return seq
    def emit_wdma(t):
        for g in wdma(t):
            for i in g:
                a(i)
                if i.startswith("buffer"):
                    vm.issue()
        wlast[t] = vm.n
    a("s_lshl_b32 s24, s22, 2")
    a("s_add_u32 s24, s24, s18")
    a("s_mul_i32 s24, s24, %d", SLOT)
    a("s_add_u32 s24, s24, %d", HT)
    a("s_lshl_b32 s25, s19, 12")
    a("s_add_u32 s26, s24, s25")
    a("s_lshl_b32 s27, s18, 13")
    a("s_add_u32 s27, s27, s25")
    hidx = []
    def emit_chunk(c):
        a("s_mov_b32 m0, s27")
        a("s_add_u32 s27, s27, 32768")
        for n in range(4):
            a("buffer_load_dwordx4 v6, s[8:11], s26 offen offset:%d lds", 1024 * n)
            vm.issue()
        a("s_add_u32 s26, s26, 8192")
        hidx.append(vm.n)
    emit_chunk(0)
    emit_wdma(0)
    emit_wdma(1)
    hidx[0] = vm.n
    a("s_mul_i32 s32, s21, 896")
    a("s_add_u32 s32, s32, %d", CS)
    a("s_mov_b32 m0, %d", CSL)
    a("s_mov_b32 exec_hi, 0x00ffffff")
    a("buffer_load_dwordx4 v6, s[8:11], s32 offen lds")
    a("s_mov_b32 exec_hi, -1")
    vm.issue()
    def emit_chunk3():
        a("s_lshl_b32 s25, s19, 11")
        a("s_add_u32 s26, s24, s25")
        a("s_add_u32 s26, s26, 24576")
        a("s_lshl_b32 s27, s18, 13")
        a("s_add_u32 s27, s27, s25")
        a("s_mov_b32 m0, s27")
        a("s_nop 0")
        for n in range(2):
            a("buffer_load_dwordx4 v6, s[8:11], s26 offen offset:%d lds", 1024 * n)
            vm.issue()
        hidx.append(vm.n)
    a("v_and_b32 v3, 15, v1")
    a("v_lshrrev_b32 v4, 2, v3")
    a("v_lshlrev_b32 v4, 6, v4")
    a("v_bfe_u32 v5, v1, 4, 1")
    a("v_lshl_add_u32 v4, v5, 5, v4")
    a("v_bfe_u32 v5, v1, 1, 1")
    a("v_lshl_add_u32 v4, v5, 4, v4")
    a("v_and_b32 v5, 1, v1")
    a("v_lshl_add_u32 v4, v5, 3, v4")
    a("v_lshrrev_b32 v5, 5, v1")
    a("v_lshl_add_u32 v4, v5, 9, v4")
    a("s_lshl_b32 s34, s18, 13")
    a("v_add_u32 v5, s34, v4")
    a("v_add_u32 v7, 65536, v5")
    a("s_mov_b32 s36, 0x3f803f80")
    for k in range(8):
        a("v_mov_b32 v%d, 0", T + k)
    c0 = math.sqrt(2.0 / math.pi)
    L2E = math.log2(math.e)
    a("v_mov_b32 v2, %s", fl(-2 * L2E * c0))
    a("v_mov_b32 v3, %s", fl(-2 * L2E * c0 * 0.044715))
    a("v_lshrrev_b32 v12, 5, v1")
    a("v_lshlrev_b32 v12, 6, v12")
    a("s_lshl_b32 s33, s19, 7")
    a("s_add_u32 s33, s33, %d", CSL)
    a("v_add_u32 v12, s33, v12")
    a("s_lshl_b32 s41, s22, 2")
    a("s_add_u32 s41, s41, s18")
    a("s_mul_i32 s41, s41, 112")
    a("s_mul_i32 s42, s21, 7")
    a("s_add_u32 s41, s41, s42")
    a("s_add_u32 s41, s41, s19")
    a("s_lshl_b32 s41, s41, 10")
    a("s_add_u32 s41, s41, %d", ACT)
    WA = [11, 13, 14, 15]
    a("s_cmp_eq_u32 s19, 0")
    for r in range(4):
        a("s_mov_b32 s34, %d", slot_addr[2 * r])
        a("s_cselect_b32 s33, s34, %d", slot_addr[min(2 * r + 1, 6)])
        a("v_add_u32 v%d, s33, v6", WA[r])
    emit_chunk(1)
    a.stamp()
    lg = Trk()
    PD = 4
    ridx = {}
    def rd(r, s):
        k = 28 * r + s
        a("ds_read_b128 v[%d:%d], v%d offset:%d", WB + 4 * (k % PD), WB + 4 * (k % PD) + 3, WA[r], 1024 * s)
        ridx[k] = lg.issue()
    def mfma(r, s):
        k = 28 * r + s
        a("s_waitcnt lgkmcnt(%d)", lg.need(ridx[k]))
        acc = ACC[r % 2]
        a("v_mfma_f32_32x32x16_bf16 v[%d:%d], v[%d:%d], v[%d:%d], %s", acc, acc + 15, WB + 4 * (k % PD), WB + 4 * (k % PD) + 3,
          HF + 4 * s, HF + 4 * s + 3, "0" if s == 0 else "v[%d:%d]" % (acc, acc + 15))
    def store_op(r):
        return "buffer_store_dwordx4 v[%d:%d], v6, s[8:11], s41 offen offset:%d" % (T + 32, T + 35, 2048 * (r % 2))
    state = {"pend": [], "cs": None, "dma": []}
    def sync(tiles):
        a("s_waitcnt vmcnt(%d)", vm.need(max(wlast[t] for t in tiles)))
        a("s_barrier")
    def dma_step():
        if state["dma"]:
            t, g = state["dma"].pop(0)
            for i in g:
                a(i)
                if i.startswith("buffer"):
                    vm.issue()
                    wlast[t] = vm.n
    def start_ep(r, pk=False):
        for q in range(4):
            a("ds_read_b128 v[%d:%d], v12 offset:%d", CSV + 4 * q, CSV + 4 * q + 3, 256 * r + 16 * q)
            state["cs"] = lg.issue()
        state["pend"] = epilogue_ops(ACC[r % 2], store_op(r), pk)
    def drain(n, r):
        if state["cs"] is not None:
            a("s_waitcnt lgkmcnt(%d)", lg.need(state["cs"]))
            state["cs"] = None
        for _ in range(min(n, len(state["pend"]))):
            i = state["pend"].pop(0)
            a(i)
            if i.startswith("buffer"):
                vm.issue()
                if r % 2 == 1:
                    a("s_add_u32 s41, s41, 4096")
    for c in range(4):
        a("s_waitcnt vmcnt(%d)", vm.need(hidx[c]))
        a("s_barrier")
        if c == 0:
            emit_chunk(2)
        if c == 1:
            emit_chunk3()
        if c == 2:
            emit_wdma(2)
        if c == 3:
            emit_wdma(3)
        ns = 8 if c < 3 else 4
        for n in range(ns):
            s_ = 8 * c + n
            vb, off = {0: (5, 0), 1: (5, 32768), 2: (7, 0), 3: (5, 0)}[c]
            for jj in range(2):
                a("ds_read_b64_tr_b16 v[%d:%d], v%d offset:%d", HF + 4 * s_ + 2 * jj, HF + 4 * s_ + 2 * jj + 1, vb, off + 1024 * n + 256 * jj)
                lg.issue()
        for n in range(PD - 1):
            rd(0, 8 * c + n)
        a("s_waitcnt lgkmcnt(%d)", PD - 1)
        a("s_cmp_lg_u32 s19, 0")
        a("s_cbranch_scc1 L_k3_st1_%d", c)
        for half in range(2):
            if half:
                a("s_branch L_k3_st2_%d", c)
                a.label("L_k3_st1_%d" % c)
            r0 = 4 * (8 * c + half * ns // 2)
            for r in range(r0, r0 + 2 * ns):
                a("v_dot2_f32_bf16 v%d, v%d, s36, v%d", T + r % 4, HF + r, T + r % 4)
                a("v_dot2_f32_bf16 v%d, v%d, v%d, v%d", T + 4 + r % 4, HF + r, HF + r, T + 4 + r % 4)
        a.label("L_k3_st2_%d" % c)
        for n in range(ns):
            if n + PD - 1 < ns:
                rd(0, 8 * c + n + PD - 1)
            mfma(0, 8 * c + n)
        a.stamp()
    a("s_nop 3")
    a("v_add_f32 v%d, v%d, v%d", T, T, T + 1)
    a("v_add_f32 v%d, v%d, v%d", T + 2, T + 2, T + 3)
    a("v_add_f32 v%d, v%d, v%d", T + 4, T + 4, T + 5)
    a("v_add_f32 v%d, v%d, v%d", T + 6, T + 6, T + 7)
    a("v_add_f32 v%d, v%d, v%d", T, T, T + 2)
    a("v_add_f32 v%d, v%d, v%d", T + 1, T + 4, T + 6)
    a("s_lshl_b32 s33, s20, 9")
    a("s_add_u32 s33, s33, %d", STX)
    a("v_lshl_add_u32 v%d, v1, 3, s33", T + 8)
    a("ds_write_b64 v%d, v[%d:%d]", T + 8, T, T + 1)
    a("s_xor_b32 s33, s33, 2048")
    a("v_lshl_add_u32 v%d, v1, 3, s33", T + 8)
    a("s_waitcnt lgkmcnt(0)")
    sync([2, 3])
    a("ds_read_b64 v[%d:%d], v%d", T + 2, T + 3, T + 8)
    for n in range(PD - 1):
        rd(1, n)
    state["dma"] = [(4, g) for g in wdma(4)] + [(5, g) for g in wdma(5)] + [(6, g) for g in wdma(6)]
    a("s_waitcnt lgkmcnt(%d)", PD - 1)
    a("v_add_f32 v%d, v%d, v%d", T, T, T + 2)
    a("v_add_f32 v%d, v%d, v%d", T + 4, T + 1, T + 3)
    a("v_mov_b32 v%d, v%d", T + 1, T)
    a("v_mov_b32 v%d, v%d", T + 5, T + 4)
    a("s_nop 1")
    a("v_permlane32_swap_b32 v%d, v%d", T, T + 1)
    a("v_permlane32_swap_b32 v%d, v%d", T + 4, T + 5)
    a("s_nop 1")
    a("v_add_f32 v%d, v%d, v%d", T, T, T + 1)
    a("v_add_f32 v%d, v%d, v%d", T + 4, T + 4, T + 5)
    a("v_mul_f32 v%d, %s, v%d", T, fl(1.0 / 448), T)
    a("v_mul_f32 v%d, %s, v%d", T + 4, fl(1.0 / 448), T + 4)
    a("v_fma_f32 v%d, -v%d, v%d, v%d", T + 4, T, T, T + 4)
    a("v_max_f32 v%d, 0, v%d", T + 4, T + 4)
    ln_scalars(a, T, T + 4, 8, 9, T + 8)
    a("v_rcp_f32 v%d, v9", T + 9)
    a("v_sub_f32 v8, 0, v8")
    a("v_fma_f32 v%d, -v9, v%d, 1.0", T + 10, T + 9)
    a("v_fma_f32 v9, v%d, v%d, v%d", T + 10, T + 9, T + 9)
    a.stamp()
    def round_(r, nxt):
        for s in range(28):
            if s + PD - 1 < 28:
                rd(r, s + PD - 1)
            elif nxt:
                if s + PD - 1 == 28:
                    sync([t for t in (2 * r + 2, 2 * r + 3) if t < 7])
                rd(r + 1, s + PD - 1 - 28)
            mfma(r, s)
            if s % 2 == 0:
                dma_step()
            if s == 0:
                start_ep(r - 1)
            if s >= 2 and state["pend"]:
                drain(4 if s < 27 else 1000, r - 1)
    round_(1, True)
    a.stamp()
    round_(2, True)
    a.stamp()
    a("s_cmp_lg_u32 s19, 0")
    a("s_cbranch_scc1 L_k3_p1")
    sv = (lg.n, vm.n)
    round_(3, False)
    a.stamp()
    a("s_nop 7")
    start_ep(3, True)
    drain(1000, 3)
    a.stamp_end(101, "k3")
    a.endp()
    a.label("L_k3_p1")
    lg.n, vm.n = sv
    a("s_lshr_b32 s33, s2, 3")
    a("s_lshl_b32 s33, s33, 2")
    a("s_add_u32 s33, s33, s18")
    a("s_mul_i32 s33, s33, 12544")
    a("s_add_u32 s33, s33, %d", WD)
    for q in range(13):
        if q and q % 4 == 0:
            a("s_add_u32 s33, s33, 4096")
        if q == 12:
            a("s_mov_b32 exec_hi, 0")
            a("s_mov_b32 exec_lo, 0xffff")
        a("buffer_load_dwordx4 v[232:235], v6, s[8:11], s33 offen offset:%d", 1024 * (q % 4))
    a("s_mov_b64 exec, -1")
    a("s_nop 7")
    start_ep(2, True)
    drain(1000, 2)
    a.endp()
    a.label("L_k3_exit")
    a("s_endpgm")
```

```python
from common import *
import math
LOG2E = math.log2(math.e)

def dpp_sum16(a, v, t):
    for mode in ("quad_perm:[1,0,3,2]", "quad_perm:[2,3,0,1]", "row_half_mirror", "row_mirror"):
        a("s_nop 1")
        a("v_add_f32_dpp v%d, v%d, v%d %s row_mask:0xf bank_mask:0xf", t, v, v, mode)
        a("v_mov_b32 v%d, v%d", v, t)

def ln_scalars(a, vmean, vvar, vm, vs, vt):
    a("v_cvt_pk_bf16_f32 v%d, v%d, v%d", vt, vmean, vvar)
    a("v_lshlrev_b32 v%d, 16, v%d", vm, vt)
    a("v_and_b32 v%d, 0xffff0000, v%d", vs, vt)
    a("v_add_f32 v%d, %s, v%d", vs, fl(1e-5), vs)
    a("v_cvt_pk_bf16_f32 v%d, v%d, v%d", vt, vs, vs)
    a("v_and_b32 v%d, 0xffff0000, v%d", vs, vt)
    a("v_sqrt_f32 v%d, v%d", vs, vs)
    a("s_nop 0")
    a("v_cvt_pk_bf16_f32 v%d, v%d, v%d", vt, vs, vs)
    a("v_and_b32 v%d, 0xffff0000, v%d", vs, vt)

def gen_ln1(a, signal=False):
    a("s_load_dwordx2 s[4:5], s[0:1], 0")
    a("s_load_dwordx2 s[6:7], s[0:1], 120")
    a("s_lshl_b32 s20, s3, 4")
    a("v_lshrrev_b32 v1, 4, v0")
    a("v_and_b32 v2, 15, v0")
    a("v_add_u32 v3, s20, v1")
    a("s_movk_i32 s21, 896")
    a("v_mul_lo_u32 v3, v3, s21")
    a("v_lshl_add_u32 v3, v2, 3, v3")
    a("s_waitcnt lgkmcnt(0)")
    a.srd(8, 4, 2048 * 896)
    a.srd(12, 6, WS_BYTES)
    for i in range(7):
        a("buffer_load_dwordx2 v[%d:%d], v3, s[8:11], 0 offen offset:%d", 10 + 2 * i, 11 + 2 * i, 128 * i)
    a("s_movk_i32 s21, 144")
    a("v_mul_lo_u32 v4, v2, s21")
    a("v_sub_u32 v5, 15, v1")
    a("v_lshl_add_u32 v5, v5, 1, v4")
    a("v_lshl_add_u32 v6, v1, 1, v4")
    a("v_add_u32 v6, 16128, v6")
    a("s_waitcnt vmcnt(0)")
    for i in range(14):
        a("v_lshlrev_b32 v%d, 16, v%d", 30 + 2 * i, 10 + i)
        a("v_and_b32 v%d, 0xffff0000, v%d", 31 + 2 * i, 10 + i)
    a("v_add_f32 v60, v30, v31")
    a("v_add_f32 v61, v32, v33")
    for i in range(4, 28, 2):
        a("v_add_f32 v60, v60, v%d", 30 + i)
        a("v_add_f32 v61, v61, v%d", 31 + i)
    a("v_add_f32 v60, v60, v61")
    dpp_sum16(a, 60, 62)
    a("v_mul_f32 v60, %s, v60", fl(1.0 / 448))
    a("v_mov_b32 v63, 0")
    a("v_mov_b32 v64, 0")
    for i in range(0, 28, 2):
        a("v_sub_f32 v61, v%d, v60", 30 + i)
        a("v_sub_f32 v62, v%d, v60", 31 + i)
        a("v_fmac_f32 v63, v61, v61")
        a("v_fmac_f32 v64, v62, v62")
    a("v_add_f32 v63, v63, v64")
    dpp_sum16(a, 63, 62)
    a("v_mul_f32 v63, %s, v63", fl(1.0 / 448))
    ln_scalars(a, 60, 63, 64, 65, 62)
    a("v_rcp_f32 v66, v65")
    for i in range(14):
        x0, x1 = 30 + 2 * i, 31 + 2 * i
        a("v_sub_f32 v%d, v%d, v64", x0, x0)
        a("v_sub_f32 v%d, v%d, v64", x1, x1)
        a("v_cvt_pk_bf16_f32 v67, v%d, v%d", x0, x1)
        a("v_lshlrev_b32 v%d, 16, v67", x0)
        a("v_and_b32 v%d, 0xffff0000, v67", x1)
        a("v_mul_f32 v68, v%d, v66", x0)
        a("v_mul_f32 v69, v%d, v66", x1)
        a("v_fma_f32 v70, -v68, v65, v%d", x0)
        a("v_fma_f32 v71, -v69, v65, v%d", x1)
        a("v_fmac_f32 v68, v70, v66")
        a("v_fmac_f32 v69, v71, v66")
        a("v_cvt_pk_bf16_f32 v%d, v68, v69", 72 + i)
    for i in range(7):
        for j in range(4):
            op = "ds_write_b16" if j % 2 == 0 else "ds_write_b16_d16_hi"
            off = 2304 * i + 36 * j
            a("%s v5, v%d offset:%d", op, 72 + 2 * i + j // 2, off)
            a("%s v6, v%d offset:%d", op, 10 + 2 * i + j // 2, off)
    a("s_waitcnt lgkmcnt(0)")
    a("s_barrier")
    a("v_and_b32 v1, 127, v0")
    a("v_lshrrev_b32 v2, 7, v0")
    a("v_lshrrev_b32 v3, 1, v1")
    a("v_and_b32 v4, 1, v1")
    a("v_mul_u32_u24 v5, 36, v3")
    a("v_lshl_add_u32 v5, v4, 4, v5")
    a("v_mul_u32_u24 v6, 16128, v2")
    a("v_add_u32 v5, v5, v6")
    a("v_lshlrev_b32 v7, 12, v3")
    a("v_lshl_add_u32 v7, v4, 4, v7")
    a("s_nop 0")
    a("v_readfirstlane_b32 s22, v2")
    a("s_lshl_b32 s23, s20, 1")
    a("s_sub_u32 s24, %d, s23", UR + 4064)
    a("s_add_u32 s25, s23, %d", XT)
    a("s_cmp_eq_u32 s22, 0")
    a("s_cselect_b32 s24, s24, s25")
    for k in range(7):
        for j in range(4):
            a("ds_read_b32 v%d, v5 offset:%d", 10 + 4 * k + j, 2304 * k + 4 * j)
    for k in range(7):
        a("s_waitcnt lgkmcnt(%d)", min(15, 4 * (6 - k)))
        a("buffer_store_dwordx4 v[%d:%d], v7, s[12:15], s24 offen", 10 + 4 * k, 13 + 4 * k)
        a("s_add_u32 s24, s24, %d", 64 * 4096)
    if signal:
        a("s_load_dwordx2 s[26:27], s[0:1], 112")
        a("s_waitcnt vmcnt(0) lgkmcnt(0)")
        a("s_barrier")
        a("v_cmp_eq_u32 vcc, 0, v0")
        a("s_and_saveexec_b64 s[28:29], vcc")
        a("s_cbranch_execz L_ln1_sig")
        a("v_mov_b32 v1, 0")
        a("v_mov_b32 v2, 1")
        a("global_atomic_add v1, v2, s[26:27] offset:128 sc1")
        a.label("L_ln1_sig")
        a("s_mov_b64 exec, s[28:29]")
    a.endp()

def cmul(a, dr, di, xr, xi, yr, yi):
    assert di == dr + 1 and xi == xr + 1 and yi == yr + 1 and dr % 2 == 0 and xr % 2 == 0 and yr % 2 == 0
    a("v_pk_mul_f32 v[%d:%d], v[%d:%d], v[%d:%d] op_sel:[0,0] op_sel_hi:[0,1]", dr, di, xr, xi, yr, yi)
    a("v_pk_fma_f32 v[%d:%d], v[%d:%d], v[%d:%d], v[%d:%d] op_sel:[1,1,0] op_sel_hi:[1,0,1] neg_lo:[1,0,0]", dr, di, xr, xi, yr, yi, dr, di)

def cexp(a, dr, di, L, va2, vbr, t0, t1):
    a("v_mul_f32 v%d, %s, v%d", t0, fl(float(L)), va2)
    a("v_mul_f32 v%d, %s, v%d", t1, fl(float(L)), vbr)
    a("v_exp_f32 v%d, v%d", t0, t0)
    a("v_fract_f32 v%d, v%d", t1, t1)
    a("v_cos_f32 v%d, v%d", dr, t1)
    a("v_sin_f32 v%d, v%d", di, t1)
    a("s_nop 0")
    a("v_mul_f32 v%d, v%d, v%d", dr, dr, t0)
    a("v_mul_f32 v%d, v%d, v%d", di, di, t0)

def gen_kgen(a, pre, TB):
    WR = 52 * 256
    CROW = 4 * WR
    a.stamp_begin()
    a("s_load_dwordx4 s[4:7], s[0:1], 8")
    a("s_load_dwordx4 s[8:11], s[0:1], 24")
    a("s_load_dwordx4 s[12:15], s[0:1], 40")
    a("s_load_dwordx2 s[16:17], s[0:1], 56")
    a("s_load_dwordx2 s[18:19], s[0:1], 120")
    a("s_load_dwordx2 s[30:31], s[0:1], 64")
    a("s_lshl_b32 s3, s2, 9")
    a("v_lshl_add_u32 v1, v0, 1, s3")
    a("s_lshl_b32 s3, s2, 1")
    a("v_mov_b32 v2, s3")
    a("s_waitcnt lgkmcnt(0)")
    for k in range(6):
        a("global_load_ushort v%d, v1, s[%d:%d]", 10 + k, 4 + 2 * k, 5 + 2 * k)
    a("global_load_ushort v16, v2, s[16:17]")
    a.srd(20, 18, WS_BYTES)
    pre(a)
    a("v_and_b32 v3, 63, v0")
    a("v_lshrrev_b32 v4, 6, v0")
    a("v_mul_u32_u24 v5, %d, v4", WR)
    for k in range(16):
        a("v_xor_b32 v6, %d, v3", k << 2)
        a("v_lshl_add_u32 v%d, v6, 2, v5", 100 + k)
    a("s_waitcnt vmcnt(%d)", pre.nvm)
    a.stamp()
    for k in range(7):
        a("v_lshlrev_b32 v%d, 16, v%d", 10 + k, 10 + k)
    a("v_mul_f32 v16, %s, v16", fl(LOG2E))
    a("v_exp_f32 v16, v16")
    a("s_nop 0")
    a("v_cvt_pk_bf16_f32 v16, v16, v16")
    a("v_and_b32 v16, 0xffff0000, v16")
    a("v_mul_f32 v17, v16, v10")
    a("v_mul_f32 v18, v16, v11")
    a("v_mul_f32 v17, %s, v17", fl(LOG2E))
    a("v_mul_f32 v18, %s, v18", fl(1.0 / (2 * math.pi)))
    a("v_mul_f32 v12, v16, v12")
    a("v_mul_f32 v13, v16, v13")
    cmul(a, 20, 21, 14, 15, 12, 13)
    cexp(a, 22, 23, 1, 17, 18, 8, 9)
    cexp(a, 24, 25, 8, 17, 18, 8, 9)
    cexp(a, 30, 31, 256, 17, 18, 8, 9)
    cexp(a, 32, 33, 512, 17, 18, 8, 9)
    cexp(a, 36, 37, 1024, 17, 18, 8, 9)
    cexp(a, 44, 45, 2048, 17, 18, 8, 9)
    cmul(a, 34, 35, 30, 31, 32, 33)
    cmul(a, 38, 39, 36, 37, 30, 31)
    cmul(a, 40, 41, 36, 37, 32, 33)
    cmul(a, 42, 43, 36, 37, 34, 35)
    Q = {m: 28 + 2 * m for m in range(1, 9)}
    def wr_x(row, r):
        a("v_cvt_pk_bf16_f32 v7, v%d, -v%d", r, r + 1)
        a("ds_write_b32 v%d, v7 offset:%d", 100 + (row & 15), row * 256)
    def wr_y(j, r):
        row = 20 + j
        a("v_cvt_pk_bf16_f32 v6, v%d, v%d", r, r + 1)
        a("ds_write_b32 v%d, v6 offset:%d", 100 + (row & 15), row * 256)
    a("v_mov_b32 v50, v20")
    a("v_mov_b32 v51, v21")
    a("v_mov_b32 v70, 0x3f80")
    a("v_lshlrev_b32 v71, 2, v3")
    a("ds_write_b32 v71, v70 offset:%d", CROW)
    wr_y(1, 24)
    cur = 24
    ytasks = []
    xs = []
    for e in range(1, 8):
        xs.append(("z", e))
    for e in range(4):
        xs.append(("q", 8 + e, 1, 2 * e))
    for (row, m, e) in ((12, 2, 0), (13, 2, 4), (14, 3, 0), (15, 3, 4), (16, 4, 0), (17, 5, 0), (18, 6, 0), (19, 7, 0), (20, 8, 0)):
        xs.append(("q", row, m, e))
    wr_x(0, 50)
    for j in range(2, 32):
        nxt = 70 if cur != 70 else 72
        cmul(a, nxt, nxt + 1, cur, cur + 1, 24, 25)
        wr_y(j, nxt)
        cur = nxt
        if xs:
            t = xs.pop(0)
            if t[0] == "z":
                e = t[1]
                cmul(a, 50 + 2 * e, 51 + 2 * e, 48 + 2 * e, 49 + 2 * e, 22, 23)
                wr_x(e, 50 + 2 * e)
            else:
                _, row, m, e = t
                cmul(a, 74, 75, Q[m], Q[m] + 1, 50 + 2 * e, 51 + 2 * e)
                wr_x(row, 74)
    assert not xs
    a.stamp()
    a("v_and_b32 v6, 31, v3")
    a("v_lshrrev_b32 v7, 5, v3")
    a("v_and_b32 v8, 15, v6")
    a("v_xor_b32 v8, v8, v7")
    a("v_lshlrev_b32 v8, 4, v8")
    a("v_lshl_add_u32 v8, v6, 8, v8")
    a("v_add_u32 v8, v8, v5")
    a("v_add_u32 v9, 20, v6")
    a("v_and_b32 v10, 15, v9")
    a("v_xor_b32 v10, v10, v7")
    a("v_lshlrev_b32 v10, 4, v10")
    a("v_lshl_add_u32 v10, v9, 8, v10")
    a("v_add_u32 v10, v10, v5")
    a("v_cmp_eq_u32 vcc, 0, v6")
    a("v_mov_b32 v9, %d", CROW)
    a("s_nop 0")
    a("v_cndmask_b32 v10, v10, v9, vcc")
    a("s_waitcnt lgkmcnt(0)")
    for s in range(8):
        a("v_xor_b32 v11, %d, v8", 32 * s)
        a("v_xor_b32 v12, %d, v10", 32 * s)
        a("ds_read_b128 v[%d:%d], v11", 16 + 8 * s, 19 + 8 * s)
        a("ds_read_b128 v[%d:%d], v12", 20 + 8 * s, 23 + 8 * s)
    for s in range(8):
        a("s_waitcnt lgkmcnt(%d)", 2 * (7 - s))
        a("v_mfma_f32_32x32x16_bf16 v[80:95], v[%d:%d], v[%d:%d], %s", 16 + 8 * s, 19 + 8 * s, 20 + 8 * s, 23 + 8 * s,
          "0" if s == 0 else "v[80:95]")
    a("v_lshl_add_u32 v11, v3, 4, v5")
    a("s_nop 15")
    for q in range(4):
        a("ds_write_b128 v11, v[%d:%d] offset:%d", 80 + 4 * q, 83 + 4 * q, 1024 * q)
    a("s_waitcnt lgkmcnt(0)")
    a("s_barrier")
    a("v_lshlrev_b32 v11, 4, v0")
    for w in range(4):
        a("ds_read_b128 v[%d:%d], v11 offset:%d", 80 + 4 * w, 83 + 4 * w, WR * w)
    a("s_waitcnt lgkmcnt(0)")
    for j in range(4):
        a("v_add_f32 v%d, v%d, v%d", 80 + j, 80 + j, 84 + j)
        a("v_add_f32 v%d, v%d, v%d", 88 + j, 88 + j, 92 + j)
    for j in range(4):
        a("v_add_f32 v%d, v%d, v%d", 80 + j, 80 + j, 88 + j)
    a("v_readfirstlane_b32 s27, v4")
    a("v_and_b32 v6, 31, v3")
    a("v_lshrrev_b32 v7, 5, v3")
    a("v_cmp_eq_u32 vcc, 1, v7")
    a("s_cmp_eq_u32 s27, 0")
    a("s_cbranch_scc1 L_kg_c0")
    a("s_cmp_eq_u32 s27, 1")
    a("s_cbranch_scc1 L_kg_c1")
    a("s_cmp_eq_u32 s27, 2")
    a("s_cbranch_scc1 L_kg_c2")
    a("s_branch L_kg_cend")
    a.label("L_kg_c0")
    a("v_lshlrev_b32 v8, 3, v6")
    a("v_lshl_add_u32 v8, v7, 2, v8")
    a("v_lshlrev_b32 v8, 2, v8")
    for e in range(4):
        a("ds_write_b32 v8, v%d offset:%d", 80 + e, TB + 4 * e)
    a("s_branch L_kg_cend")
    a.label("L_kg_c1")
    a("v_lshlrev_b32 v8, 4, v6")
    a("v_lshlrev_b32 v9, 3, v6")
    a("v_add_u32 v8, %d, v8", 256 * 4)
    a("v_add_u32 v9, %d, v9", 384 * 4)
    a("v_add_u32 v10, 8, v8")
    a("v_add_u32 v12, 256, v9")
    a("v_cndmask_b32 v8, v8, v9, vcc")
    a("v_cndmask_b32 v10, v10, v12, vcc")
    a("ds_write_b32 v8, v80 offset:%d", TB)
    a("ds_write_b32 v8, v81 offset:%d", TB + 4)
    a("ds_write_b32 v10, v82 offset:%d", TB)
    a("ds_write_b32 v10, v83 offset:%d", TB + 4)
    a("s_branch L_kg_cend")
    a.label("L_kg_c2")
    a("v_lshlrev_b32 v8, 2, v6")
    a("v_add_u32 v8, %d, v8", 512 * 4)
    a("v_lshlrev_b32 v9, 2, v6")
    a("v_add_u32 v9, %d, v9", 640 * 4)
    a("v_cndmask_b32 v8, v8, v9, vcc")
    a("v_mov_b32 v9, 128")
    a("v_mov_b32 v10, 0")
    a("v_cndmask_b32 v9, v9, v10, vcc")
    for e in range(4):
        a("ds_write_b32 v8, v%d offset:%d", 80 + e, TB)
        if e == 0:
            a("v_add_u32 v8, 128, v8")
        elif e < 3:
            a("v_add_u32 v8, v8, v9")
    a.label("L_kg_cend")
    a("s_waitcnt lgkmcnt(0)")
    a("s_barrier")
    a.stamp()

def gen_expand(a, TB):
    a("v_add_u32 v1, 1, v0")
    a("s_mul_i32 s24, s2, %d", KSTR)
    a("s_add_u32 s24, s24, %d", KS)
    a("s_add_u32 s25, s24, %d", KO)
    a("s_mov_b32 s26, 0")
    a.label("L_kg_exp")
    a("v_lshlrev_b32 v2, 3, v1")
    a("v_subrev_u32 v2, 15, v2")
    for k in range(9):
        t = 20 + 8 * k
        a("v_add_u32 v%d, %d, v2", t, k)
        a("v_max_i32 v%d, 0, v%d", t + 1, t)
        a("v_cvt_f32_u32 v%d, v%d", t + 2, t + 1)
        a("v_cvt_pk_bf16_f32 v%d, v%d, v%d", t + 2, t + 2, t + 2)
        a("v_lshrrev_b32 v%d, 16, v%d", t + 2, t + 2)
        a("v_subrev_u32 v%d, 17024, v%d", t + 2, t + 2)
        a("v_min_u32 v%d, 127, v%d", t + 1, t + 1)
        a("v_max_i32 v%d, v%d, v%d", t + 2, t + 2, t + 1)
        a("v_lshlrev_b32 v%d, 2, v%d", t + 2, t + 2)
        a("ds_read_b32 v%d, v%d offset:%d", t + 7, t + 2, TB)
    a("s_waitcnt lgkmcnt(0)")
    for k in range(9):
        t = 20 + 8 * k
        a("v_cmp_le_i32 vcc, 0, v%d", t)
        a("s_nop 1")
        a("v_cndmask_b32 v%d, 0, v%d, vcc", t + 7, t + 7)
    V = [27 + 8 * k for k in range(9)]
    for k in range(4):
        a("v_cvt_pk_bf16_f32 v%d, v%d, v%d", 100 + k, V[2 * k], V[2 * k + 1])
        a("v_cvt_pk_bf16_f32 v%d, v%d, v%d", 104 + k, V[2 * k + 1], V[2 * k + 2])
    a("v_lshlrev_b32 v3, 4, v1")
    a("buffer_store_dwordx4 v[100:103], v3, s[20:23], s24 offen")
    a("buffer_store_dwordx4 v[104:107], v3, s[20:23], s25 offen")
    a("v_cmp_eq_u32 vcc, 0, v0")
    a("s_and_saveexec_b64 s[28:29], vcc")
    a("s_cbranch_execz L_kg_done")
    for k in range(4):
        a("v_mov_b32 v%d, 0", 108 + k)
    a("v_mov_b32 v3, 0")
    a("buffer_store_dwordx4 v[108:111], v3, s[20:23], s24 offen")
    a("buffer_store_dwordx4 v[108:111], v3, s[20:23], s25 offen")
    a("ds_read_b64 v[112:113], v3 offset:%d", TB + 638 * 4)
    a("ds_read_b32 v114, v3 offset:%d", TB + 640 * 4)
    a("s_waitcnt lgkmcnt(0)")
    a("v_cvt_pk_bf16_f32 v20, v113, v113")
    a("v_cvt_pk_bf16_f32 v21, v113, v114")
    a("v_cvt_pk_bf16_f32 v22, v114, v114")
    a("v_mov_b32 v23, v22")
    a("v_mov_b32 v24, v20")
    a("v_mov_b32 v25, v22")
    a("v_mov_b32 v26, v22")
    a("v_mov_b32 v27, v22")
    a("v_mov_b32 v3, %d", 257 * 16)
    a("buffer_store_dwordx4 v[20:23], v3, s[20:23], s24 offen")
    a("buffer_store_dwordx4 v[24:27], v3, s[20:23], s25 offen")
    a.label("L_kg_done")
    a("s_mov_b64 exec, -1")
    a.stamp_end(100, "kg")
    a.endp()

def gen_k1(a):
    import k2
    a.kstart("k1_kernel")
    a("s_cmp_ge_u32 s2, 744")
    a("s_cbranch_scc1 L_k1_exit")
    a("s_cmp_lt_u32 s2, 448")
    a("s_cbranch_scc1 L_k1_kgen")
    a("s_cmp_lt_u32 s2, 576")
    a("s_cbranch_scc1 L_k1_ln1")
    a("s_sub_u32 s3, s2, 576")
    k2.gen_wprep(a)
    a.label("L_k1_ln1")
    a("s_sub_u32 s3, s2, 448")
    gen_ln1(a)
    a.label("L_k1_kgen")
    class Pre:
        nvm = 0
        def __call__(self, a):
            pass
    gen_kgen(a, Pre(), 4096)
    gen_expand(a, 4096)
    a.label("L_k1_exit")
    a("s_endpgm")
```

```python
from common import *
import k1, k2
TB = 50176
ES = 40960
OS = ES + 4224 + 64
URL = 40960
XTL = 45568
LDS12 = 53504

def gen_kc(a):
    class Pre:
        nvm = 0
        def __call__(self, a):
            a("s_load_dwordx2 s[30:31], s[0:1], 64")
            a("s_load_dwordx2 s[32:33], s[0:1], 112")
    k1.gen_kgen(a, Pre(), TB)
    a("v_lshlrev_b32 v2, 3, v0")
    a("v_subrev_u32 v2, 7, v2")
    for k in range(9):
        t = 20 + 4 * k
        a("v_add_u32 v%d, %d, v2", t, k)
        a("v_max_i32 v%d, 0, v%d", t + 1, t)
        a("v_cvt_f32_u32 v%d, v%d", t + 2, t + 1)
        a("v_cvt_pk_bf16_f32 v%d, v%d, v%d", t + 2, t + 2, t + 2)
        a("v_lshrrev_b32 v%d, 16, v%d", t + 2, t + 2)
        a("v_subrev_u32 v%d, 17024, v%d", t + 2, t + 2)
        a("v_min_u32 v%d, 127, v%d", t + 1, t + 1)
        a("v_max_i32 v%d, v%d, v%d", t + 2, t + 2, t + 1)
        a("v_lshlrev_b32 v%d, 2, v%d", t + 2, t + 2)
        a("ds_read_b32 v%d, v%d offset:%d", t + 3, t + 2, TB)
    a("v_mov_b32 v15, 0")
    a("ds_read_b64 v[112:113], v15 offset:%d", TB + 638 * 4)
    a("ds_read_b32 v114, v15 offset:%d", TB + 640 * 4)
    a("s_waitcnt lgkmcnt(0)")
    for k in range(7):
        t = 20 + 4 * k
        a("v_cmp_le_i32 vcc, 0, v%d", t)
        a("s_nop 1")
        a("v_cndmask_b32 v%d, 0, v%d, vcc", t + 3, t + 3)
    V = [23 + 4 * k for k in range(9)]
    for k in range(4):
        a("v_cvt_pk_bf16_f32 v%d, v%d, v%d", 100 + k, V[2 * k], V[2 * k + 1])
        a("v_cvt_pk_bf16_f32 v%d, v%d, v%d", 104 + k, V[2 * k + 1], V[2 * k + 2])
    a("v_lshlrev_b32 v15, 4, v0")
    a("ds_write_b128 v15, v[100:103] offset:%d", ES + 16)
    a("ds_write_b128 v15, v[104:107] offset:%d", OS + 16)
    a("v_cmp_eq_u32 vcc, 0, v0")
    a("s_and_saveexec_b64 s[28:29], vcc")
    a("s_cbranch_execz L_kc_u0")
    for k in range(4):
        a("v_mov_b32 v%d, 0", 108 + k)
    a("ds_write_b128 v15, v[108:111] offset:%d", ES)
    a("ds_write_b128 v15, v[108:111] offset:%d", OS)
    a("v_cvt_pk_bf16_f32 v20, v113, v113")
    a("v_cvt_pk_bf16_f32 v21, v113, v114")
    a("v_cvt_pk_bf16_f32 v22, v114, v114")
    a("v_mov_b32 v23, v22")
    a("v_mov_b32 v24, v20")
    a("v_mov_b32 v25, v22")
    a("v_mov_b32 v26, v22")
    a("v_mov_b32 v27, v22")
    a("ds_write_b128 v15, v[20:23] offset:%d", ES + 257 * 16)
    a("ds_write_b128 v15, v[24:27] offset:%d", OS + 257 * 16)
    a.label("L_kc_u0")
    a("s_mov_b64 exec, s[28:29]")
    a("s_waitcnt lgkmcnt(0)")
    a("s_barrier")
    a("v_and_b32 v2, 1, v0")
    a("v_mul_u32_u24 v2, %d, v2", OS - ES)
    a("v_lshrrev_b32 v4, 1, v0")
    a("v_lshl_add_u32 v2, v4, 2, v2")
    for n in range(9):
        if n == 8:
            a("v_cmp_gt_u32 vcc, 8, v0")
            a("s_and_saveexec_b64 s[28:29], vcc")
            a("s_cbranch_execz L_kc_img")
        for j in range(4):
            a("ds_read_b32 v%d, v2 offset:%d", 32 + 4 * n + j, ES + 512 * n + 4 * j)
        if n == 8:
            a("s_waitcnt lgkmcnt(0)")
            a("ds_write_b128 v15, v[64:67] offset:%d", 4096 * 8)
            a.label("L_kc_img")
            a("s_mov_b64 exec, s[28:29]")
    a("s_waitcnt lgkmcnt(0)")
    for n in range(8):
        a("ds_write_b128 v15, v[%d:%d] offset:%d", 32 + 4 * n, 35 + 4 * n, 4096 * n)
    a.stamp()
    a("v_cmp_eq_u32 vcc, 0, v0")
    a("s_and_saveexec_b64 s[28:29], vcc")
    a("s_cbranch_execz L_kc_wdone")
    a("v_mov_b32 v16, 0")
    a("s_mov_b32 s34, 0")
    a.label("L_kc_spin")
    a("global_load_dword v17, v16, s[32:33] offset:128 sc0 sc1")
    a("s_add_u32 s34, s34, 1")
    a("s_waitcnt vmcnt(0)")
    a("v_readfirstlane_b32 s35, v17")
    a("s_cmp_ge_u32 s35, 128")
    a("s_cbranch_scc1 L_kc_wdone")
    a("s_sleep 16")
    a("s_cmp_lt_u32 s34, 0x400000")
    a("s_cbranch_scc1 L_kc_spin")
    a.label("L_kc_wdone")
    a("s_mov_b64 exec, s[28:29]")
    a("s_waitcnt lgkmcnt(0)")
    a("s_barrier")
    a.stamp()
    a("s_lshl_b32 s27, s2, 12")
    a("s_add_u32 s28, s27, %d", UR)
    a("s_add_u32 s29, s27, %d", XT)
    a("buffer_load_dwordx4 v[32:35], v15, s[20:23], s28 offen sc0 sc1")
    a("buffer_load_dwordx4 v[36:39], v15, s[20:23], s29 offen sc0 sc1")
    a("s_lshl_b32 s3, s2, 1")
    a("v_mov_b32 v3, s3")
    a("global_load_ushort v8, v3, s[30:31]")
    a("v_and_b32 v1, 63, v0")
    a("v_lshrrev_b32 v2, 6, v0")
    a("s_nop 0")
    a("v_readfirstlane_b32 s36, v2")
    for i in range(4):
        a("s_mov_b32 s%d, s%d", 8 + i, 20 + i)
    a("s_mov_b32 s20, s36")
    a("v_lshlrev_b32 v6, 4, v1")
    a("v_and_b32 v9, 15, v1")
    a("v_lshrrev_b32 v10, 4, v1")
    a("v_lshlrev_b32 v11, 5, v9")
    a("v_lshl_add_u32 v11, v10, 3, v11")
    a("v_mov_b32 v16, 0")
    a("v_mov_b32 v17, 0")
    a("v_lshlrev_b32 v18, 3, v1")
    a("ds_write_b64 v18, v[16:17] offset:%d", URL + 4096)
    a("v_lshl_add_u32 v20, v10, 3, v9")
    a("v_lshlrev_b32 v20, 4, v20")
    a("s_lshl_b32 s29, s20, 10")
    a("v_add_u32 v20, s29, v20")
    a("v_lshlrev_b32 v21, 4, v10")
    a("v_lshlrev_b32 v22, 5, v9")
    a("v_sub_u32 v21, v21, v22")
    a("s_lshl_b32 s29, s20, 7")
    a("s_add_u32 s29, s29, %d", URL + 4064 - 3584)
    a("v_add_u32 v21, s29, v21")
    a("s_waitcnt vmcnt(1)")
    a("ds_write_b128 v15, v[32:35] offset:%d", URL)
    a("ds_write_b128 v15, v[36:39] offset:%d", XTL)
    a("s_waitcnt lgkmcnt(0)")
    a("s_barrier")
    a.stamp()
    AC = 96
    for h in range(2):
        for k in range(8):
            a("ds_read_b128 v[%d:%d], v21 offset:%d", 64 + 4 * k, 67 + 4 * k, 512 * (7 - k) + 64 * h)
            a("ds_read_b128 v[%d:%d], v20 offset:%d", 32 + 4 * k, 35 + 4 * k, 4096 * k + 512 * h)
        done = set()
        for bb in range(8):
            for c in range(bb, 8):
                m = c - bb
                need = max(2 * m + 1, 2 * bb + 2)
                if need not in done and all(need > d for d in done):
                    a("s_waitcnt lgkmcnt(%d)", 16 - need)
                    done.add(need)
                first = (h == 0 and bb == 0)
                a("v_mfma_f32_16x16x32_bf16 v[%d:%d], v[%d:%d], v[%d:%d], %s", AC + 4 * c, AC + 3 + 4 * c,
                  32 + 4 * bb, 35 + 4 * bb, 64 + 4 * m, 67 + 4 * m, "0" if first else "v[%d:%d]" % (AC + 4 * c, AC + 3 + 4 * c))
    a.stamp()
    a("s_barrier")
    a("s_lshl_b32 s29, s20, 13")
    a("v_add_u32 v22, s29, v6")
    a("s_nop 7")
    for c in range(8):
        a("ds_write_b128 v22, v[%d:%d] offset:%d", AC + 4 * c, AC + 3 + 4 * c, 1024 * c)
    a("s_lshl_b32 s29, s20, 10")
    a("v_add_u32 v23, s29, v11")
    a("ds_read_b64 v[12:13], v23 offset:%d", XTL)
    a("ds_read_b64 v[14:15], v23 offset:%d", XTL + 512)
    a("s_waitcnt lgkmcnt(0)")
    a("s_barrier")

def gen_k12(a):
    a.kstart("k12_kernel")
    a("s_cmp_ge_u32 s2, 744")
    a("s_cbranch_scc1 L_k12_exit")
    a("s_mov_b32 s3, s2")
    a("s_cmp_lt_u32 s2, 128")
    a("s_cbranch_scc1 L_k12_ln1")
    a("s_cmp_lt_u32 s2, 296")
    a("s_cbranch_scc1 L_k12_wp")
    a("s_sub_u32 s2, s2, 296")
    gen_kc(a)
    k2.gen_conv_tail(a, URL)
    a.label("L_k12_wp")
    a("s_sub_u32 s3, s2, 128")
    k2.gen_wprep(a)
    a.label("L_k12_ln1")
    a.sc1 = True
    k1.gen_ln1(a, signal=True)
    a.sc1 = False
    a.label("L_k12_exit")
    a("s_endpgm")
```

```python
from common import *

IMG = 0
URL = 33792

def gen_conv(a):
    a.stamp_begin()
    a("s_load_dwordx2 s[4:5], s[0:1], 64")
    a("s_load_dwordx2 s[6:7], s[0:1], 120")
    a("v_and_b32 v1, 63, v0")
    a("v_lshrrev_b32 v2, 6, v0")
    a("s_nop 0")
    a("v_readfirstlane_b32 s20, v2")
    a("s_lshl_b32 s3, s2, 1")
    a("v_mov_b32 v3, s3")
    a("s_waitcnt lgkmcnt(0)")
    a.srd(8, 6, WS_BYTES)
    a("v_and_b32 v4, 1, v1")
    a("v_mul_u32_u24 v4, %d, v4", KO)
    a("v_lshrrev_b32 v5, 1, v1")
    a("v_lshl_add_u32 v4, v5, 2, v4")
    a("v_lshlrev_b32 v6, 4, v1")
    a("s_mul_i32 s21, s2, %d", KSTR)
    a("s_add_u32 s21, s21, %d", KS)
    a("s_lshl_b32 s22, s20, 7")
    a("s_add_u32 s21, s21, s22")
    a("s_lshl_b32 s23, s20, 10")
    a("s_lshl_b32 s24, s2, 12")
    a("s_add_u32 s24, s24, s23")
    a("s_add_u32 s25, s23, %d", URL)
    a("s_mov_b32 m0, s25")
    a("s_add_u32 s26, s24, %d", UR)
    a("buffer_load_dwordx4 v6, s[8:11], s26 offen lds")
    for n in range(8):
        a("s_mov_b32 m0, s23")
        a("s_add_u32 s23, s23, 4096")
        a("buffer_load_dwordx4 v4, s[8:11], s21 offen lds")
        a("s_add_u32 s21, s21, 512")
    a("s_cmp_lg_u32 s20, 0")
    a("s_cbranch_scc1 L_cv_skip33")
    a("s_mov_b32 m0, s23")
    a("s_nop 0")
    a("buffer_load_dwordx4 v4, s[8:11], s21 offen lds")
    a.label("L_cv_skip33")
    a("global_load_ushort v8, v3, s[4:5]")
    a("v_and_b32 v9, 15, v1")
    a("v_lshrrev_b32 v10, 4, v1")
    a("v_lshlrev_b32 v11, 5, v9")
    a("v_lshl_add_u32 v11, v10, 3, v11")
    a("s_lshl_b32 s27, s2, 12")
    a("s_lshl_b32 s28, s20, 10")
    a("s_add_u32 s27, s27, s28")
    a("s_add_u32 s28, s27, %d", XT)
    a("buffer_load_dwordx2 v[12:13], v11, s[8:11], s28 offen")
    a("buffer_load_dwordx2 v[14:15], v11, s[8:11], s28 offen offset:512")
    a("v_mov_b32 v16, 0")
    a("v_mov_b32 v17, 0")
    a("v_lshlrev_b32 v18, 3, v1")
    a("ds_write_b64 v18, v[16:17] offset:%d", URL + 4096)
    a("v_lshl_add_u32 v20, v10, 3, v9")
    a("v_lshlrev_b32 v20, 4, v20")
    a("s_lshl_b32 s29, s20, 10")
    a("v_add_u32 v20, s29, v20")
    a("v_lshlrev_b32 v21, 4, v10")
    a("v_lshlrev_b32 v22, 5, v9")
    a("v_sub_u32 v21, v21, v22")
    a("s_lshl_b32 s29, s20, 7")
    a("s_add_u32 s29, s29, %d", URL + 4064 - 3584)
    a("v_add_u32 v21, s29, v21")
    a("s_waitcnt vmcnt(3) lgkmcnt(0)")
    a.stamp()
    a("s_barrier")
    a.stamp()
    FB = [32, 96]
    def reads(h):
        for k in range(8):
            a("ds_read_b128 v[%d:%d], v21 offset:%d", FB[h] + 32 + 4 * k, FB[h] + 35 + 4 * k, 512 * (7 - k) + 64 * h)
            a("ds_read_b128 v[%d:%d], v20 offset:%d", FB[h] + 4 * k, FB[h] + 3 + 4 * k, 4096 * k + 512 * h)
    def mf(h):
        for bb in range(8):
            for c in range(bb, 8):
                m = c - bb
                first = (h == 0 and bb == 0)
                a("v_mfma_f32_16x16x32_bf16 v[%d:%d], v[%d:%d], v[%d:%d], %s", 160 + 4 * c, 163 + 4 * c,
                  FB[h] + 4 * bb, FB[h] + 3 + 4 * bb, FB[h] + 32 + 4 * m, FB[h] + 35 + 4 * m,
                  "0" if first else "v[%d:%d]" % (160 + 4 * c, 163 + 4 * c))
    reads(0)
    a("s_waitcnt lgkmcnt(0)")
    reads(1)
    mf(0)
    a("s_waitcnt lgkmcnt(0)")
    a("s_and_b32 s30, s2, 1")
    a("s_mul_i32 s30, s30, %d", 8 * 7 * 28672)
    a("s_lshr_b32 s31, s2, 3")
    a("s_lshl_b32 s31, s31, 2")
    a("s_add_u32 s31, s31, s20")
    a("s_mul_i32 s31, s31, 7168")
    a("s_add_u32 s30, s30, s31")
    a("s_add_u32 s30, s30, %d", WGU)
    for q in range(7):
        if q == 4:
            a("s_add_u32 s30, s30, 4096")
        pass
    a("s_mov_b32 exec_hi, -1")
    mf(1)
    a.stamp()
    a("s_barrier")
    a("s_lshl_b32 s29, s20, 13")
    a("v_add_u32 v22, s29, v6")
    a("s_nop 7")
    for c in range(8):
        a("ds_write_b128 v22, v[%d:%d] offset:%d", 160 + 4 * c, 163 + 4 * c, 1024 * c)
    a("s_waitcnt lgkmcnt(0)")
    a("s_barrier")
    gen_conv_tail(a, URL)

def gen_conv_tail(a, URL):
    a("s_lshl_b32 s29, s20, 11")
    a("v_add_u32 v22, s29, v6")
    for cc in range(2):
        for w in range(4):
            a("ds_read_b128 v[%d:%d], v22 offset:%d", 32 + 16 * cc + 4 * w, 35 + 16 * cc + 4 * w, 8192 * w + 1024 * cc)
    a("s_lshl_b32 s29, s20, 10")
    a("s_sub_u32 s29, %d, s29", URL + 4088 - 512)
    a("v_sub_u32 v23, s29, v11")
    a("ds_read_b64 v[70:71], v23 offset:512")
    a("ds_read_b64 v[72:73], v23")
    a("s_waitcnt vmcnt(0) lgkmcnt(0)" if URL == 33792 else "s_waitcnt vmcnt(0) lgkmcnt(0)")
    a("v_lshlrev_b32 v8, 16, v8")
    a("v_lshrrev_b32 v24, 1, v9")
    a("v_mul_u32_u24 v24, 28672, v24")
    a("v_and_b32 v25, 1, v9")
    a("v_lshl_add_u32 v24, v25, 5, v24")
    a("v_lshl_add_u32 v24, v10, 3, v24")
    a("s_mul_i32 s28, s20, %d", 16 * 28672)
    a("s_lshl_b32 s29, s2, 6")
    a("s_add_u32 s28, s28, s29")
    a("s_add_u32 s28, s28, %d", HT)
    for cc in range(2):
        b = 32 + 16 * cc
        for r in range(4):
            a("v_add_f32 v%d, v%d, v%d", b + r, b + r, b + 4 + r)
            a("v_add_f32 v%d, v%d, v%d", b + 8 + r, b + 8 + r, b + 12 + r)
        for r in range(4):
            a("v_add_f32 v%d, v%d, v%d", b + r, b + r, b + 8 + r)
        uu = 70 + 2 * cc
        xx = 12 + 2 * cc
        a("v_cvt_pk_bf16_f32 v80, v%d, v%d", b, b + 1)
        a("v_cvt_pk_bf16_f32 v81, v%d, v%d", b + 2, b + 3)
        a("v_lshlrev_b32 v82, 16, v80")
        a("v_and_b32 v83, 0xffff0000, v80")
        a("v_lshlrev_b32 v84, 16, v81")
        a("v_and_b32 v85, 0xffff0000, v81")
        a("v_and_b32 v86, 0xffff0000, v%d", uu + 1)
        a("v_lshlrev_b32 v87, 16, v%d", uu + 1)
        a("v_and_b32 v88, 0xffff0000, v%d", uu)
        a("v_lshlrev_b32 v89, 16, v%d", uu)
        for r in range(4):
            a("v_mul_f32 v%d, v%d, v8", 86 + r, 86 + r)
        a("v_cvt_pk_bf16_f32 v80, v86, v87")
        a("v_cvt_pk_bf16_f32 v81, v88, v89")
        a("v_lshlrev_b32 v86, 16, v80")
        a("v_and_b32 v87, 0xffff0000, v80")
        a("v_lshlrev_b32 v88, 16, v81")
        a("v_and_b32 v89, 0xffff0000, v81")
        for r in range(4):
            a("v_add_f32 v%d, v%d, v%d", 82 + r, 82 + r, 86 + r)
        a("v_cvt_pk_bf16_f32 v80, v82, v83")
        a("v_cvt_pk_bf16_f32 v81, v84, v85")
        a("v_lshlrev_b32 v82, 16, v80")
        a("v_and_b32 v83, 0xffff0000, v80")
        a("v_lshlrev_b32 v84, 16, v81")
        a("v_and_b32 v85, 0xffff0000, v81")
        a("v_lshlrev_b32 v86, 16, v%d", xx)
        a("v_and_b32 v87, 0xffff0000, v%d", xx)
        a("v_lshlrev_b32 v88, 16, v%d", xx + 1)
        a("v_and_b32 v89, 0xffff0000, v%d", xx + 1)
        for r in range(4):
            a("v_add_f32 v%d, v%d, v%d", 82 + r, 82 + r, 86 + r)
        a("v_cvt_pk_bf16_f32 v%d, v82, v83", 90 + 2 * cc)
        a("v_cvt_pk_bf16_f32 v%d, v84, v85", 91 + 2 * cc)
        a("buffer_store_dwordx2 v[%d:%d], v24, s[8:11], s28 offen", 90 + 2 * cc, 91 + 2 * cc)
        a("s_add_u32 s28, s28, %d", 8 * 28672)
    a.stamp()
    a.stamp_end(100, "cv")
    a.endp()

def gen_wprep(a):
    a("s_load_dwordx4 s[4:7], s[0:1], 80")
    a("s_load_dwordx2 s[28:29], s[0:1], 96")
    a("s_load_dwordx2 s[30:31], s[0:1], 120")
    a("v_and_b32 v1, 63, v0")
    a("v_lshrrev_b32 v2, 6, v0")
    a("s_nop 0")
    a("v_readfirstlane_b32 s20, v2")
    a("s_waitcnt lgkmcnt(0)")
    a.srd(16, 30, WS_BYTES)
    a("s_cmp_ge_u32 s3, 112")
    a("s_cbranch_scc1 L_wp_down")
    a.srd(8, 4, 448 * 3584)
    a.srd(12, 6, 448 * 3584)
    a("v_and_b32 v3, 15, v1")
    a("v_lshrrev_b32 v4, 4, v1")
    a("v_bfe_u32 v6, v3, 2, 1")
    a("v_lshlrev_b32 v6, 3, v6")
    a("v_bfe_u32 v7, v3, 3, 1")
    a("v_lshl_add_u32 v6, v7, 2, v6")
    a("v_and_b32 v7, 3, v3")
    a("v_add_u32 v6, v6, v7")
    a("s_lshl_b32 s21, s3, 4")
    a("v_add_u32 v6, s21, v6")
    a("v_lshlrev_b32 v6, 1, v6")
    a("v_mul_u32_u24 v7, %d, v4", 8 * 3584)
    a("v_add_u32 v10, v6, v7")
    for j in range(1, 8):
        a("v_add_u32 v%d, %d, v10", 10 + j, 3584 * j)
    a("v_lshrrev_b32 v6, 1, v4")
    a("v_lshlrev_b32 v6, 10, v6")
    a("v_and_b32 v7, 1, v4")
    a("v_lshl_add_u32 v6, v7, 9, v6")
    a("v_lshl_add_u32 v6, v3, 4, v6")
    a("s_mul_i32 s22, s20, %d", 32 * 3584)
    a("s_mul_i32 s24, s3, %d", 28 * 1024)
    a("s_lshl_b32 s25, s20, 11")
    a("s_add_u32 s24, s24, s25")
    a("s_add_u32 s24, s24, %d", WGU)
    a("v_mov_b32 v110, 0")
    a("v_mov_b32 v111, 0")
    a("s_mov_b32 s26, 0x3f803f80")
    def L(it):
        for j in range(8):
            a("buffer_load_ushort v%d, v%d, s[8:11], s22 offen", 40 + 16 * it + j, 10 + j)
            a("buffer_load_ushort v%d, v%d, s[12:15], s22 offen", 48 + 16 * it + j, 10 + j)
        a("s_add_u32 s22, s22, %d", 128 * 3584)
    def P(it, n):
        a("s_waitcnt vmcnt(%d)", n)
        b = 40 + 16 * it
        o = 20 + 8 * (it % 2)
        for q in range(8):
            a("v_lshl_or_b32 v%d, v%d, 16, v%d", o + q, b + 1 + 2 * q, b + 2 * q)
        if it == 3:
            a("s_cmp_ge_u32 s20, 2")
            a("s_cbranch_scc1 L_wp_gu_done")
        a("buffer_store_dwordx4 v[%d:%d], v6, s[16:19], s24 offen", o, o + 3)
        a("buffer_store_dwordx4 v[%d:%d], v6, s[16:19], s24 offen offset:256", o + 4, o + 7)
        a("s_add_u32 s24, s24, 8192")
        for q in range(4):
            a("v_dot2_f32_bf16 v110, v%d, s26, v110", o + q)
            a("v_dot2_f32_bf16 v111, v%d, s26, v111", o + 4 + q)
    L(0); L(1); L(2)
    P(0, 32)
    L(3)
    P(1, 34)
    P(2, 20)
    P(3, 4)
    a.label("L_wp_gu_done")
    a("s_nop 3")
    a("s_lshl_b32 s25, s20, 9")
    a("v_lshl_add_u32 v7, v1, 2, s25")
    a("ds_write_b32 v7, v110")
    a("ds_write_b32 v7, v111 offset:256")
    a("s_waitcnt lgkmcnt(0)")
    a("s_barrier")
    a("v_cmp_gt_u32 vcc, 32, v0")
    a("s_and_saveexec_b64 s[32:33], vcc")
    a("s_cbranch_execz L_wp_end")
    a("v_lshrrev_b32 v8, 4, v0")
    a("v_lshlrev_b32 v8, 8, v8")
    a("v_lshl_add_u32 v8, v3, 2, v8")
    for w in range(4):
        for kq in range(4):
            a("ds_read_b32 v%d, v8 offset:%d", 30 + 4 * w + kq, 512 * w + 64 * kq)
    a("s_waitcnt lgkmcnt(0)")
    for k in range(1, 16):
        a("v_add_f32 v30, v30, v%d", 30 + k)
    a("v_bfe_u32 v8, v0, 2, 1")
    a("v_lshlrev_b32 v8, 4, v8")
    a("v_lshrrev_b32 v9, 3, v0")
    a("v_lshl_add_u32 v8, v9, 2, v8")
    a("v_and_b32 v9, 3, v0")
    a("v_add_u32 v8, v8, v9")
    a("v_lshlrev_b32 v8, 2, v8")
    a("s_lshl_b32 s25, s3, 7")
    a("s_add_u32 s25, s25, %d", CS)
    a("buffer_store_dword v30, v8, s[16:19], s25 offen")
    a.label("L_wp_end")
    a.endp()
    a.label("L_wp_down")
    a.srd(8, 28, 1792 * 896)
    a("s_sub_u32 s3, s3, 112")
    a("s_lshr_b32 s21, s3, 2")
    a("s_and_b32 s22, s3, 3")
    a("s_mul_i32 s22, s22, 28")
    a("s_mul_i32 s23, s20, 7")
    a("s_add_u32 s22, s22, s23")
    a("v_and_b32 v3, 31, v1")
    a("v_lshrrev_b32 v4, 5, v1")
    a("v_bfe_u32 v6, v3, 2, 1")
    a("v_lshlrev_b32 v6, 4, v6")
    a("v_lshrrev_b32 v7, 3, v3")
    a("v_lshl_add_u32 v6, v7, 2, v6")
    a("v_and_b32 v7, 3, v3")
    a("v_add_u32 v6, v6, v7")
    a("s_lshl_b32 s23, s21, 5")
    a("v_add_u32 v6, s23, v6")
    a("v_lshlrev_b32 v6, 1, v6")
    a("v_mul_u32_u24 v7, %d, v4", 8 * 896)
    a("v_add_u32 v10, v6, v7")
    a("v_add_u32 v11, %d, v10", 4 * 896)
    a("v_lshlrev_b32 v5, 4, v1")
    a("s_mul_i32 s24, s22, %d", 16 * 896)
    a("s_mul_i32 s25, s21, 112")
    a("s_add_u32 s25, s25, s22")
    a("s_lshl_b32 s25, s25, 10")
    a("s_add_u32 s25, s25, %d", WD)
    for s in range(7):
        for j in range(8):
            a("buffer_load_ushort v%d, v%d, s[8:11], s24 offen offset:%d", 60 + 8 * s + j, 10 + j // 4, 896 * (j % 4))
        a("s_add_u32 s24, s24, %d", 16 * 896)
    for s in range(7):
        a("s_waitcnt vmcnt(%d)", 8 * (6 - s) + s)
        for q in range(4):
            a("v_lshl_or_b32 v%d, v%d, 16, v%d", 20 + 4 * s + q, 61 + 8 * s + 2 * q, 60 + 8 * s + 2 * q)
        a("buffer_store_dwordx4 v[%d:%d], v5, s[16:19], s25 offen", 20 + 4 * s, 23 + 4 * s)
        a("s_add_u32 s25, s25, 1024")
    a.endp()

def gen_k2(a):
    a.kstart("k2_kernel")
    a("s_cmp_ge_u32 s2, 448")
    a("s_cbranch_scc1 L_k2_exit")
    gen_conv(a)
    a.label("L_k2_exit")
    a("s_endpgm")
```

```python
from common import *
from k1 import ln_scalars
import math
SLOT = 28672
CSL = 155648
STX = 159744
LDS = STX + 4096
VGPR = 256
HF = 16
ACC = [128, 144]
WB = 160
CSV = 176
T = 192

class Trk:
    def __init__(self):
        self.n = 0
    def issue(self):
        self.n += 1
        return self.n
    def need(self, idx):
        return self.n - idx

def epilogue_ops(acc, tile_store, pk):
    ops = []
    g = acc
    u = acc + 8
    tq = T + 16
    P = lambda r: "v[%d:%d]" % (r, r + 1)
    def mul(d, x, y, n):
        if pk:
            for r in range(0, n, 2):
                ops.append("v_pk_mul_f32 %s, %s, %s" % (P(d + r), P(x + r), P(y + r)))
        else:
            for r in range(n):
                ops.append("v_mul_f32 v%d, v%d, v%d" % (d + r, x + r, y + r))
    if pk:
        for r in range(0, 16, 2):
            ops.append("v_pk_fma_f32 %s, v[8:9], %s, %s op_sel:[0,0,0] op_sel_hi:[0,1,1]" % (P(acc + r), P(CSV + r), P(acc + r)))
        for r in range(0, 16, 2):
            ops.append("v_pk_mul_f32 %s, v[8:9], %s op_sel:[1,0] op_sel_hi:[1,1]" % (P(acc + r), P(acc + r)))
    else:
        for r in range(16):
            ops.append("v_fma_f32 v%d, v8, v%d, v%d" % (acc + r, CSV + r, acc + r))
        for r in range(16):
            ops.append("v_mul_f32 v%d, v9, v%d" % (acc + r, acc + r))
    mul(tq, g, g, 8)
    if pk:
        for r in range(0, 8, 2):
            ops.append("v_pk_fma_f32 %s, %s, v[2:3], v[2:3] op_sel:[0,1,0] op_sel_hi:[1,1,0]" % (P(tq + r), P(tq + r)))
    else:
        for r in range(8):
            ops.append("v_fma_f32 v%d, v%d, v3, v2" % (tq + r, tq + r))
    mul(tq, tq, g, 8)
    for r in range(8):
        ops.append("v_exp_f32 v%d, v%d" % (tq + r, tq + r))
    mul(g, g, u, 8)
    for r in range(8):
        ops.append("v_add_f32 v%d, 1.0, v%d" % (tq + r, tq + r))
    for r in range(8):
        ops.append("v_rcp_f32 v%d, v%d" % (tq + r, tq + r))
    mul(g, g, tq, 8)
    for r in range(0, 8, 2):
        ops.append("v_cvt_pk_bf16_f32 v%d, v%d, v%d" % (T + 32 + r // 2, g + r, g + r + 1))
    ops.append(tile_store)
    return ops

def gen_k3(a):
    a.kstart("k3_kernel")
    a("s_cmp_ge_u32 s2, 256")
    a("s_cbranch_scc1 L_k3_exit")
    a.stamp_begin()
    a("s_load_dwordx2 s[6:7], s[0:1], 120")
    a("s_and_b32 s3, s2, 7")
    a("s_lshr_b32 s4, s2, 3")
    a("s_and_b32 s21, s3, 1")
    a("s_lshl_b32 s21, s21, 3")
    a("s_and_b32 s22, s4, 7")
    a("s_add_u32 s21, s21, s22")
    a("s_lshr_b32 s22, s3, 1")
    a("s_lshl_b32 s22, s22, 2")
    a("s_lshr_b32 s23, s4, 3")
    a("s_add_u32 s22, s22, s23")
    a("v_and_b32 v1, 63, v0")
    a("v_lshrrev_b32 v2, 6, v0")
    a("s_nop 0")
    a("v_readfirstlane_b32 s20, v2")
    a("v_lshlrev_b32 v6, 4, v1")
    a("s_and_b32 s18, s20, 3")
    a("s_lshr_b32 s19, s20, 2")
    a("s_mul_i32 s29, s20, 3584")
    a("s_mul_i32 s28, s21, %d", 7 * SLOT)
    a("s_add_u32 s28, s28, s29")
    a("s_add_u32 s28, s28, %d", WGU)
    a("s_waitcnt lgkmcnt(0)")
    a.srd(8, 6, WS_BYTES)
    vm = Trk()
    slot_addr = {0: 98304, 1: 126976, 2: 32768, 3: 65536, 4: 0, 5: 98304, 6: 126976}
    wlast = {}
    def wdma(t):
        seq = [["s_add_u32 s30, s29, %d" % slot_addr[t], "s_add_u32 s31, s28, %d" % (t * SLOT), "s_mov_b32 m0, s30", "s_nop 0",
                "buffer_load_dwordx4 v6, s[8:11], s31 offen lds"]]
        for q in range(1, 3):
            seq.append(["buffer_load_dwordx4 v6, s[8:11], s31 offen offset:%d lds" % (1024 * q)])
        seq.append(["s_mov_b32 exec_hi, 0", "buffer_load_dwordx4 v6, s[8:11], s31 offen offset:3072 lds", "s_mov_b32 exec_hi, -1", "s_nop 3"])
        return seq
    def emit_wdma(t):
        for g in wdma(t):
            for i in g:
                a(i)
                if i.startswith("buffer"):
                    vm.issue()
        wlast[t] = vm.n
    a("s_lshl_b32 s24, s22, 2")
    a("s_add_u32 s24, s24, s18")
    a("s_mul_i32 s24, s24, %d", SLOT)
    a("s_add_u32 s24, s24, %d", HT)
    a("s_lshl_b32 s25, s19, 12")
    a("s_add_u32 s26, s24, s25")
    a("s_lshl_b32 s27, s18, 13")
    a("s_add_u32 s27, s27, s25")
    hidx = []
    def emit_chunk(c):
        a("s_mov_b32 m0, s27")
        a("s_add_u32 s27, s27, 32768")
        for n in range(4):
            a("buffer_load_dwordx4 v6, s[8:11], s26 offen offset:%d lds", 1024 * n)
            vm.issue()
        a("s_add_u32 s26, s26, 8192")
        hidx.append(vm.n)
    emit_chunk(0)
    emit_wdma(0)
    emit_wdma(1)
    hidx[0] = vm.n
    a("s_mul_i32 s32, s21, 896")
    a("s_add_u32 s32, s32, %d", CS)
    a("s_mov_b32 m0, %d", CSL)
    a("s_mov_b32 exec_hi, 0x00ffffff")
    a("buffer_load_dwordx4 v6, s[8:11], s32 offen lds")
    a("s_mov_b32 exec_hi, -1")
    vm.issue()
    def emit_chunk3():
        a("s_lshl_b32 s25, s19, 11")
        a("s_add_u32 s26, s24, s25")
        a("s_add_u32 s26, s26, 24576")
        a("s_lshl_b32 s27, s18, 13")
        a("s_add_u32 s27, s27, s25")
        a("s_mov_b32 m0, s27")
        a("s_nop 0")
        for n in range(2):
            a("buffer_load_dwordx4 v6, s[8:11], s26 offen offset:%d lds", 1024 * n)
            vm.issue()
        hidx.append(vm.n)
    a("v_and_b32 v3, 15, v1")
    a("v_lshrrev_b32 v4, 2, v3")
    a("v_lshlrev_b32 v4, 6, v4")
    a("v_bfe_u32 v5, v1, 4, 1")
    a("v_lshl_add_u32 v4, v5, 5, v4")
    a("v_bfe_u32 v5, v1, 1, 1")
    a("v_lshl_add_u32 v4, v5, 4, v4")
    a("v_and_b32 v5, 1, v1")
    a("v_lshl_add_u32 v4, v5, 3, v4")
    a("v_lshrrev_b32 v5, 5, v1")
    a("v_lshl_add_u32 v4, v5, 9, v4")
    a("s_lshl_b32 s34, s18, 13")
    a("v_add_u32 v5, s34, v4")
    a("v_add_u32 v7, 65536, v5")
    a("v_and_b32 v%d, 15, v1", T)
    a("v_bfe_u32 v%d, v1, 4, 1", T + 1)
    a("v_cmp_eq_u32 vcc, v%d, v%d", T, T + 1)
    a("v_mov_b32 v%d, 0x3f803f80", T + 2)
    a("s_nop 0")
    a("v_cndmask_b32 v236, 0, v%d, vcc", T + 2)
    for k in range(1, 4):
        a("v_mov_b32 v%d, v236", 236 + k)
    c0 = math.sqrt(2.0 / math.pi)
    L2E = math.log2(math.e)
    a("v_mov_b32 v2, %s", fl(-2 * L2E * c0))
    a("v_mov_b32 v3, %s", fl(-2 * L2E * c0 * 0.044715))
    a("v_lshrrev_b32 v12, 5, v1")
    a("v_lshlrev_b32 v12, 6, v12")
    a("s_lshl_b32 s33, s19, 7")
    a("s_add_u32 s33, s33, %d", CSL)
    a("v_add_u32 v12, s33, v12")
    a("s_lshl_b32 s41, s22, 2")
    a("s_add_u32 s41, s41, s18")
    a("s_mul_i32 s41, s41, 112")
    a("s_mul_i32 s42, s21, 7")
    a("s_add_u32 s41, s41, s42")
    a("s_add_u32 s41, s41, s19")
    a("s_lshl_b32 s41, s41, 10")
    a("s_add_u32 s41, s41, %d", ACT)
    WA = [11, 13, 14, 15]
    a("s_cmp_eq_u32 s19, 0")
    for r in range(4):
        a("s_mov_b32 s34, %d", slot_addr[2 * r])
        a("s_cselect_b32 s33, s34, %d", slot_addr[min(2 * r + 1, 6)])
        a("v_add_u32 v%d, s33, v6", WA[r])
    emit_chunk(1)
    a.stamp()
    lg = Trk()
    PD = 4
    ridx = {}
    def rd(r, s):
        k = 28 * r + s
        a("ds_read_b128 v[%d:%d], v%d offset:%d", WB + 4 * (k % PD), WB + 4 * (k % PD) + 3, WA[r], 1024 * s)
        ridx[k] = lg.issue()
    def mfma(r, s):
        k = 28 * r + s
        a("s_waitcnt lgkmcnt(%d)", lg.need(ridx[k]))
        acc = ACC[r % 2]
        a("v_mfma_f32_32x32x16_bf16 v[%d:%d], v[%d:%d], v[%d:%d], %s", acc, acc + 15, WB + 4 * (k % PD), WB + 4 * (k % PD) + 3,
          HF + 4 * s, HF + 4 * s + 3, "0" if s == 0 else "v[%d:%d]" % (acc, acc + 15))
    def store_op(r):
        return "buffer_store_dwordx4 v[%d:%d], v6, s[8:11], s41 offen offset:%d sc1" % (T + 32, T + 35, 2048 * (r % 2))
    state = {"pend": [], "cs": None, "dma": []}
    def sync(tiles):
        a("s_waitcnt vmcnt(%d)", vm.need(max(wlast[t] for t in tiles)))
        a("s_barrier")
    def dma_step():
        if state["dma"]:
            t, g = state["dma"].pop(0)
            for i in g:
                a(i)
                if i.startswith("buffer"):
                    vm.issue()
                    wlast[t] = vm.n
    def start_ep(r, pk=False):
        for q in range(4):
            a("ds_read_b128 v[%d:%d], v12 offset:%d", CSV + 4 * q, CSV + 4 * q + 3, 256 * r + 16 * q)
            state["cs"] = lg.issue()
        state["pend"] = epilogue_ops(ACC[r % 2], store_op(r), pk)
    def drain(n, r):
        if state["cs"] is not None:
            a("s_waitcnt lgkmcnt(%d)", lg.need(state["cs"]))
            state["cs"] = None
        for _ in range(min(n, len(state["pend"]))):
            i = state["pend"].pop(0)
            a(i)
            if i.startswith("buffer"):
                vm.issue()
                if r % 2 == 1:
                    a("s_add_u32 s41, s41, 4096")
    for c in range(4):
        a("s_waitcnt vmcnt(%d)", vm.need(hidx[c]))
        a("s_barrier")
        if c == 0:
            emit_chunk(2)
        if c == 1:
            emit_chunk3()
        if c == 2:
            emit_wdma(2)
        if c == 3:
            emit_wdma(3)
        ns = 8 if c < 3 else 4
        for n in range(ns):
            s_ = 8 * c + n
            vb, off = {0: (5, 0), 1: (5, 32768), 2: (7, 0), 3: (5, 0)}[c]
            for jj in range(2):
                a("ds_read_b64_tr_b16 v[%d:%d], v%d offset:%d", HF + 4 * s_ + 2 * jj, HF + 4 * s_ + 2 * jj + 1, vb, off + 1024 * n + 256 * jj)
                lg.issue()
        for n in range(PD - 1):
            rd(0, 8 * c + n)
        a("s_waitcnt lgkmcnt(%d)", PD - 1)
        a("s_cmp_lg_u32 s19, 0")
        a("s_cbranch_scc1 L_k3_st1_%d", c)
        for half in range(2):
            if half:
                a("s_branch L_k3_st2_%d", c)
                a.label("L_k3_st1_%d" % c)
            for n in range(ns):
                s_ = 8 * c + n
                if half == 0:
                    a("v_mfma_f32_32x32x16_bf16 v[232:247], v[%d:%d], v[%d:%d], %s", HF + 4 * s_, HF + 4 * s_ + 3, HF + 4 * s_, HF + 4 * s_ + 3,
                      "0" if s_ == 0 else "v[232:247]")
                else:
                    a("v_mfma_f32_16x16x32_bf16 v[232:235], v[236:239], v[%d:%d], %s", HF + 4 * s_, HF + 4 * s_ + 3,
                      "0" if s_ == 0 else "v[232:235]")
        a.label("L_k3_st2_%d" % c)
        for n in range(ns):
            if n + PD - 1 < ns:
                rd(0, 8 * c + n + PD - 1)
            mfma(0, 8 * c + n)
        a.stamp()
    a("s_lshl_b32 s33, s18, 8")
    a("s_add_u32 s33, s33, %d", STX)
    a("v_and_b32 v%d, 31, v1", T + 16)
    a("v_lshl_add_u32 v%d, v%d, 3, s33", T + 17, T + 16)
    a("s_cmp_lg_u32 s19, 0")
    a("s_cbranch_scc1 L_k3_sp1")
    for b, sh in enumerate((0, 1, 3, 4)):
        a("v_bfe_u32 v%d, v%d, %d, 1", T + 18, T + 16, sh)
        a("v_cmp_ne_u32 s[%d:%d], 0, v%d", 44 + 2 * b, 45 + 2 * b, T + 18)
    a("v_bfe_u32 v%d, v%d, 2, 1", T + 18, T + 16)
    a("v_lshrrev_b32 v%d, 5, v1", T + 19)
    a("v_cmp_eq_u32 vcc, v%d, v%d", T + 18, T + 19)
    a("s_nop 7")
    n = 8
    src = 232
    for lvl in range(4):
        for i in range(n):
            a("v_cndmask_b32 v%d, v%d, v%d, s[%d:%d]", T + i, src + 2 * i, src + 2 * i + 1, 44 + 2 * lvl, 45 + 2 * lvl)
        src = T
        n //= 2
    a("s_and_saveexec_b64 s[34:35], vcc")
    a("ds_write_b32 v%d, v%d offset:4", T + 17, T)
    a("s_mov_b64 exec, s[34:35]")
    a("s_branch L_k3_sp2")
    a.label("L_k3_sp1")
    a("s_nop 7")
    a("s_mov_b64 s[34:35], exec")
    a("s_mov_b64 exec, 0xffff")
    a("ds_write_b32 v%d, v232", T + 17)
    a("ds_write_b32 v%d, v233 offset:128", T + 17)
    a("s_mov_b64 exec, s[34:35]")
    a.label("L_k3_sp2")
    a("s_waitcnt lgkmcnt(0)")
    sync([2, 3])
    a("ds_read_b64 v[%d:%d], v%d", T + 2, T + 3, T + 17)
    for n in range(PD - 1):
        rd(1, n)
    state["dma"] = [(4, g) for g in wdma(4)] + [(5, g) for g in wdma(5)] + [(6, g) for g in wdma(6)]
    a("s_waitcnt lgkmcnt(%d)", PD - 1)
    a("v_mov_b32 v%d, v%d", T, T + 2)
    a("v_mov_b32 v%d, v%d", T + 4, T + 3)
    a("v_mul_f32 v%d, %s, v%d", T, fl(1.0 / 448), T)
    a("v_mul_f32 v%d, %s, v%d", T + 4, fl(1.0 / 448), T + 4)
    a("v_fma_f32 v%d, -v%d, v%d, v%d", T + 4, T, T, T + 4)
    a("v_max_f32 v%d, 0, v%d", T + 4, T + 4)
    ln_scalars(a, T, T + 4, 8, 9, T + 8)
    a("v_rcp_f32 v%d, v9", T + 9)
    a("v_sub_f32 v8, 0, v8")
    a("v_fma_f32 v%d, -v9, v%d, 1.0", T + 10, T + 9)
    a("v_fma_f32 v9, v%d, v%d, v%d", T + 10, T + 9, T + 9)
    a.stamp()
    def round_(r, nxt):
        for s in range(28):
            if s + PD - 1 < 28:
                rd(r, s + PD - 1)
            elif nxt:
                if s + PD - 1 == 28:
                    sync([t for t in (2 * r + 2, 2 * r + 3) if t < 7])
                rd(r + 1, s + PD - 1 - 28)
            mfma(r, s)
            if s % 2 == 0:
                dma_step()
            if s == 0:
                start_ep(r - 1)
            if s >= 2 and state["pend"]:
                drain(4 if s < 27 else 1000, r - 1)
    round_(1, True)
    a.stamp()
    round_(2, True)
    a.stamp()
    a("s_cmp_lg_u32 s19, 0")
    a("s_cbranch_scc1 L_k3_p1")
    sv = (lg.n, vm.n)
    round_(3, False)
    a.stamp()
    a("s_nop 7")
    start_ep(3, True)
    drain(1000, 3)
    a.stamp_end(101, "k3")
    a.endp()
    a.label("L_k3_p1")
    lg.n, vm.n = sv
    a("s_lshr_b32 s33, s2, 3")
    a("s_lshl_b32 s33, s33, 2")
    a("s_add_u32 s33, s33, s18")
    a("s_mul_i32 s33, s33, 12544")
    a("s_add_u32 s33, s33, %d", WD)
    for q in range(13):
        if q and q % 4 == 0:
            a("s_add_u32 s33, s33, 4096")
        if q == 12:
            a("s_mov_b32 exec_hi, 0")
            a("s_mov_b32 exec_lo, 0xffff")
        pass
    a("s_mov_b64 exec, -1")
    a("s_nop 7")
    start_ep(2, True)
    drain(1000, 2)
    a.endp()
    a.label("L_k3_exit")
    a("s_endpgm")
```

```python
from common import *
LDS = 131072 + 8192
VGPR = 256
PD = 8
NS = 14
def gen_k4(a):
    a.kstart("k4_kernel")
    a("s_cmp_ge_u32 s2, 224")
    a("s_cbranch_scc1 L_k4_exit")
    a.stamp_begin()
    a("s_load_dwordx2 s[6:7], s[0:1], 120")
    a("s_load_dwordx2 s[4:5], s[0:1], 104")
    a("s_and_b32 s3, s2, 7")
    a("s_lshr_b32 s16, s2, 3")
    a("s_and_b32 s21, s16, 3")
    a("s_lshl_b32 s3, s3, 2")
    a("s_add_u32 s21, s21, s3")
    a("s_lshr_b32 s22, s16, 2")
    a("v_and_b32 v1, 63, v0")
    a("v_lshrrev_b32 v2, 6, v0")
    a("s_nop 0")
    a("v_readfirstlane_b32 s20, v2")
    a("v_lshlrev_b32 v6, 4, v1")
    a("s_mul_i32 s26, s20, %d", NS)
    a("s_mul_i32 s27, s22, 224")
    a("s_add_u32 s27, s27, s26")
    a("s_lshl_b32 s27, s27, 10")
    a("s_add_u32 s28, s27, %d", WD)
    a("s_add_u32 s29, s28, %d", 112 * 1024)
    a("s_mul_i32 s27, s21, 224")
    a("s_add_u32 s27, s27, s26")
    a("s_lshl_b32 s27, s27, 10")
    a("s_add_u32 s30, s27, %d", ACT)
    a("s_add_u32 s31, s30, %d", 112 * 1024)
    a("s_waitcnt lgkmcnt(0)")
    a.srd(8, 6, WS_BYTES)
    FR = 96
    issued = []
    def ld(s):
        b = FR + 16 * (s % PD)
        for q in (2, 0, 3, 1):
            a("buffer_load_dwordx4 v[%d:%d], v6, s[8:11], s%d offen offset:%d", b + 4 * q, b + 4 * q + 3, 28 + q, 1024 * (s % 4))
            issued.append((s, q))
        if s % 4 == 3:
            for q in range(4):
                a("s_add_u32 s%d, s%d, 4096", 28 + q, 28 + q)
    for s in range(PD):
        ld(s)
    a.srd(12, 4, 2048 * 896)
    a("s_and_b32 s18, s20, 3")
    a("s_lshr_b32 s19, s20, 2")
    a("v_and_b32 v3, 31, v1")
    a("v_mul_u32_u24 v3, 896, v3")
    a("v_lshrrev_b32 v4, 5, v1")
    a("v_lshl_add_u32 v3, v4, 5, v3")
    a("s_lshr_b32 s23, s18, 1")
    a("s_lshl_b32 s24, s21, 1")
    a("s_add_u32 s24, s24, s23")
    a("s_mul_i32 s25, s24, 28672")
    a("s_mul_i32 s24, s24, %d", 32 * 896)
    a("s_and_b32 s23, s18, 1")
    a("s_lshl_b32 s32, s22, 1")
    a("s_add_u32 s32, s32, s23")
    a("s_lshl_b32 s33, s32, 6")
    a("s_add_u32 s24, s24, s33")
    a("s_lshl_b32 s33, s19, 4")
    a("s_add_u32 s24, s24, s33")
    a("s_lshl_b32 s32, s32, 11")
    a("s_add_u32 s25, s25, s32")
    a("s_lshl_b32 s33, s19, 10")
    a("s_add_u32 s25, s25, s33")
    a("s_add_u32 s25, s25, %d", HT)
    a("s_lshl_b32 s34, s18, 11")
    a("s_add_u32 s34, s34, 131072")
    a("s_add_u32 s33, s34, s33")
    a("s_mov_b32 m0, s33")
    a("s_nop 0")
    a("buffer_load_dwordx4 v6, s[8:11], s25 offen lds")
    issued.append(("r", 0))
    a("v_and_b32 v16, 15, v1")
    a("v_lshrrev_b32 v17, 2, v16")
    a("v_lshlrev_b32 v17, 6, v17")
    a("v_bfe_u32 v18, v1, 4, 1")
    a("v_lshl_add_u32 v17, v18, 5, v17")
    a("v_and_b32 v18, 3, v1")
    a("v_lshl_add_u32 v17, v18, 3, v17")
    a("v_lshrrev_b32 v18, 5, v1")
    a("v_lshl_add_u32 v17, v18, 10, v17")
    a("s_lshl_b32 s33, s19, 9")
    a("s_add_u32 s33, s33, s34")
    a("v_add_u32 v17, s33, v17")
    a.stamp()
    for s in range(NS):
        b = FR + 16 * (s % PD)
        last = max(i for i, e in enumerate(issued) if e[0] == s)
        a("s_waitcnt vmcnt(%d)", len(issued) - 1 - (last - 2))
        def mf(ta, tb):
            acc = 32 + 16 * (ta + 2 * tb)
            a("v_mfma_f32_32x32x16_bf16 v[%d:%d], v[%d:%d], v[%d:%d], %s", acc, acc + 15, b + 4 * ta, b + 4 * ta + 3,
              b + 8 + 4 * tb, b + 8 + 4 * tb + 3, "0" if s == 0 else "v[%d:%d]" % (acc, acc + 15))
        mf(0, 0)
        a("s_waitcnt vmcnt(%d)", len(issued) - 1 - (last - 1))
        mf(0, 1)
        a("s_waitcnt vmcnt(%d)", len(issued) - 1 - last)
        mf(1, 0)
        mf(1, 1)
        if s + PD < NS:
            ld(s + PD)
    a.stamp()
    a("s_lshl_b32 s26, s20, 14")
    a("v_add_u32 v7, s26, v6")
    a("s_nop 7")
    for tl in range(4):
        for q in range(4):
            a("ds_write_b128 v7, v[%d:%d] offset:%d", 32 + 16 * tl + 4 * q, 35 + 16 * tl + 4 * q, 4096 * tl + 1024 * q)
    a("s_waitcnt vmcnt(0) lgkmcnt(0)")
    a("s_barrier")
    a("s_lshl_b32 s26, s18, 12")
    a("s_lshl_b32 s27, s19, 11")
    a("s_add_u32 s26, s26, s27")
    a("v_add_u32 v7, s26, v6")
    a("v_add_u32 v5, 65536, v7")
    for w in range(8):
        for q in range(2):
            a("ds_read_b128 v[%d:%d], v%d offset:%d", 32 + 8 * w + 4 * q, 35 + 8 * w + 4 * q, 7 if w < 4 else 5, 16384 * (w % 4) + 1024 * q)
    for q in range(2):
        a("ds_read_b64_tr_b16 v[%d:%d], v17 offset:%d", 8 + 2 * q, 9 + 2 * q, 256 * q)
    a("s_waitcnt lgkmcnt(0)")
    for st in (32, 16, 8):
        for r in range(st):
            a("v_add_f32 v%d, v%d, v%d", 32 + r, 32 + r, 32 + st + r)
    for r in range(0, 8, 2):
        a("v_cvt_pk_bf16_f32 v%d, v%d, v%d", 48 + r // 2, 32 + r, 33 + r)
    for r in range(4):
        a("v_lshlrev_b32 v%d, 16, v%d", 32 + 2 * r, 48 + r)
        a("v_and_b32 v%d, 0xffff0000, v%d", 33 + 2 * r, 48 + r)
        a("v_lshlrev_b32 v%d, 16, v%d", 64 + 2 * r, 8 + r)
        a("v_and_b32 v%d, 0xffff0000, v%d", 65 + 2 * r, 8 + r)
    for r in range(8):
        a("v_add_f32 v%d, v%d, v%d", 32 + r, 32 + r, 64 + r)
    for r in range(0, 8, 2):
        a("v_cvt_pk_bf16_f32 v%d, v%d, v%d", 48 + r // 2, 32 + r, 33 + r)
    a("buffer_store_dwordx4 v[48:51], v3, s[12:15], s24 offen")
    a.stamp_end(100, "k4")
    a.endp()
    a.label("L_k4_exit")
    a("s_endpgm")
```

```python
import sys
from common import *
import k1, k2
HDR = open('sequential_preLN__ssm_conv_s4__geglu_ffn__prompt.s.ref').read().split('; Override launch')[0]
stage = int(sys.argv[1]) if len(sys.argv) > 1 else 4
a = Asm()
a.prof = len(sys.argv) > 2 and sys.argv[2] == "prof"
OUT = sys.argv[3] if len(sys.argv) > 3 else 'sequential_preLN__ssm_conv_s4__geglu_ffn__prompt.s'
MERGE = False
if MERGE:
    import k12
    launches = ["; @launch kernel=k12_kernel grid=(744,1,1) block=(256,1,1) lds=%d" % k12.LDS12]
else:
    launches = ["; @launch kernel=k1_kernel grid=(744,1,1) block=(256,1,1) lds=53504",
            "; @launch kernel=k2_kernel grid=(448,1,1) block=(256,1,1) lds=38400"]
a.pv = 120
if MERGE:
    k12.gen_k12(a)
    kds = kd("k12_kernel", 128)
else:
    k1.gen_k1(a)
    a.pv = 184
    k2.gen_k2(a)
    kds = kd("k1_kernel", 128) + kd("k2_kernel", 192)
a.pv = 248
PV4 = 120
if stage >= 3:
    import k3
    launches.append("; @launch kernel=k3_kernel grid=(256,1,1) block=(512,1,1) lds=%d" % k3.LDS)
    k3.gen_k3(a)
    kds += kd("k3_kernel", k3.VGPR)
if stage >= 4:
    import k4
    launches.append("; @launch kernel=k4_kernel grid=(224,1,1) block=(256,1,1) lds=%d" % k4.LDS)
    k4.gen_k4(a)
    kds += kd("k4_kernel", k4.VGPR)
out = HDR + "\n".join(launches) + "\n" + '.amdgcn_target "amdgcn-amd-amdhsa--gfx950"\n.text\n' + a.text()
out += '.section .rodata,"a"\n.p2align 6\n' + kds
open(OUT, 'w').write(out)
print(len(out))
```

```python
import struct
def f2u(x):
    return struct.unpack('<I', struct.pack('<f', x))[0]
def fl(x):
    return "0x%08x" % f2u(x)

UR, XT, KS, WGU, CS, WD, HT, HR, ACT = 0x0, 0x200000, 0x400000, 0x800000, 0xB80000, 0xC00000, 0xE00000, 0x1000000, 0x1200000
WS_BYTES = 0x1900000
KSTR = 8704
KO = 4352

class Asm:
    def __init__(self):
        self.L = []
    pv = 248
    sc1 = False
    def __call__(self, s, *a):
        if self.sc1 and s.startswith("buffer_store_dword") and "s[12:15], s24" not in s:
            s = s + " sc1"
        if "%(p" in s:
            for k in range(4):
                s = s.replace("%%(p%d)d" % k, str(self.pv + k))
        self.L.append("    " + (s % a if a else s))
    def label(self, s):
        self.L.append(s + ":")
    def raw(self, s):
        self.L.append(s)
    def srd(self, b, p, n):
        self("s_mov_b32 s%d, s%d", b, p)
        self("s_and_b32 s%d, s%d, 0xffff", b + 1, p + 1)
        self("s_mov_b32 s%d, 0x%x", b + 2, n)
        self("s_mov_b32 s%d, 0x20000", b + 3)
    def kstart(self, name):
        self.raw(".globl %s" % name)
        self.raw(".p2align 8")
        self.raw(".type %s,@function" % name)
        self.label(name)
        self.kidx = getattr(self, "kidx", -1) + 1
        if self.prof:
            self("s_memrealtime s[96:97]")
    prof = False
    nst = 0
    def stamp(self):
        if not self.prof:
            return
        self("s_memtime s[%d:%d]", 60 + 2 * self.nst, 61 + 2 * self.nst)
        self("s_waitcnt lgkmcnt(0)")
        self.nst += 1
    def stamp_begin(self):
        self.nst = 0
        if self.prof:
            self("s_memrealtime s[56:57]")
        self.stamp()
    def stamp_end(self, sel, tag):
        if not self.prof:
            return
        self.stamp()
        self("s_memrealtime s[58:59]")
        self("s_load_dwordx2 s[54:55], s[0:1], 112")
        self("s_waitcnt vmcnt(0) lgkmcnt(0)")
        self("s_cmp_lg_u32 s2, %d", sel)
        self("s_cbranch_scc1 L_st_%s", tag)
        self("v_cmp_eq_u32 vcc, 0, v0")
        self("s_and_saveexec_b64 s[52:53], vcc")
        self("s_cbranch_execz L_st_%s", tag)
        self("v_mov_b32 v%(p1)d, 0")
        for i in range(2 + self.nst):
            self("v_mov_b32 v%(p0)d, s%d", 56 + 2 * i)
            self("global_store_dword v%(p1)d, v%(p0)d, s[54:55] offset:%d", 4 * i)
        self.label("L_st_%s" % tag)
    nend = 0
    def endp(self):
        if self.prof:
            self.nend += 1
            self("s_mov_b64 exec, -1")
            self("s_waitcnt vmcnt(0) lgkmcnt(0)")
            self("s_memrealtime s[98:99]")
            self("s_load_dwordx2 s[54:55], s[0:1], 120")
            self("s_waitcnt lgkmcnt(0)")
            self("v_cmp_eq_u32 vcc, 0, v0")
            self("s_and_saveexec_b64 s[52:53], vcc")
            self("s_cbranch_execz L_end_%d", self.nend)
            self("s_getreg_b32 s97, hwreg(HW_REG_XCC_ID)")
            self("s_and_b32 s97, s97, 15")
            self("s_andn2_b32 s96, s96, 15")
            self("s_or_b32 s96, s96, s97")
            self("s_lshl_b32 s53, s2, 3")
            self("s_add_u32 s53, s53, 0x%x", 0x1A00000 + self.kidx * 0x10000)
            self("v_mov_b32 v%(p1)d, s53")
            self("v_mov_b32 v%(p2)d, s96")
            self("v_mov_b32 v%(p3)d, s98")
            self("global_store_dwordx2 v%(p1)d, v[%(p2)d:%(p3)d], s[54:55]")
            self.label("L_end_%d" % self.nend)
        self("s_endpgm")
    def text(self):
        return "\n".join(self.L) + "\n"

def vr(b, n=1):
    return "v%d" % b if n == 1 else "v[%d:%d]" % (b, b + n - 1)
def sr(b, n=1):
    return "s%d" % b if n == 1 else "s[%d:%d]" % (b, b + n - 1)

def kd(name, vgpr, sgpr=102, agpr=0):
    acc = (vgpr + 3) // 4 * 4
    nfv = acc + agpr if agpr else vgpr
    return """.amdhsa_kernel %s
  .amdhsa_next_free_vgpr %d
  .amdhsa_next_free_sgpr %d
  .amdhsa_accum_offset %d
  .amdhsa_group_segment_fixed_size 0
  .amdhsa_kernarg_size 128
  .amdhsa_user_sgpr_count 2
  .amdhsa_user_sgpr_kernarg_segment_ptr 1
  .amdhsa_system_sgpr_workgroup_id_x 1
.end_amdhsa_kernel
""" % (name, nfv, sgpr, acc)
```

```python
from common import *
import math
LOG2E = math.log2(math.e)

def dpp_sum16(a, v, t):
    for mode in ("quad_perm:[1,0,3,2]", "quad_perm:[2,3,0,1]", "row_half_mirror", "row_mirror"):
        a("s_nop 1")
        a("v_add_f32_dpp v%d, v%d, v%d %s row_mask:0xf bank_mask:0xf", t, v, v, mode)
        a("v_mov_b32 v%d, v%d", v, t)

def ln_scalars(a, vmean, vvar, vm, vs, vt):
    a("v_cvt_pk_bf16_f32 v%d, v%d, v%d", vt, vmean, vvar)
    a("v_lshlrev_b32 v%d, 16, v%d", vm, vt)
    a("v_and_b32 v%d, 0xffff0000, v%d", vs, vt)
    a("v_add_f32 v%d, %s, v%d", vs, fl(1e-5), vs)
    a("v_cvt_pk_bf16_f32 v%d, v%d, v%d", vt, vs, vs)
    a("v_and_b32 v%d, 0xffff0000, v%d", vs, vt)
    a("v_sqrt_f32 v%d, v%d", vs, vs)
    a("s_nop 0")
    a("v_cvt_pk_bf16_f32 v%d, v%d, v%d", vt, vs, vs)
    a("v_and_b32 v%d, 0xffff0000, v%d", vs, vt)

def gen_ln1(a, signal=False):
    a("s_load_dwordx2 s[4:5], s[0:1], 0")
    a("s_load_dwordx2 s[6:7], s[0:1], 120")
    a("s_lshl_b32 s20, s3, 4")
    a("v_lshrrev_b32 v1, 4, v0")
    a("v_and_b32 v2, 15, v0")
    a("v_add_u32 v3, s20, v1")
    a("s_movk_i32 s21, 896")
    a("v_mul_lo_u32 v3, v3, s21")
    a("v_lshl_add_u32 v3, v2, 3, v3")
    a("s_waitcnt lgkmcnt(0)")
    a.srd(8, 4, 2048 * 896)
    a.srd(12, 6, WS_BYTES)
    for i in range(7):
        a("buffer_load_dwordx2 v[%d:%d], v3, s[8:11], 0 offen offset:%d", 10 + 2 * i, 11 + 2 * i, 128 * i)
    a("s_movk_i32 s21, 144")
    a("v_mul_lo_u32 v4, v2, s21")
    a("v_sub_u32 v5, 15, v1")
    a("v_lshl_add_u32 v5, v5, 1, v4")
    a("v_lshl_add_u32 v6, v1, 1, v4")
    a("v_add_u32 v6, 16128, v6")
    a("s_waitcnt vmcnt(0)")
    for i in range(14):
        a("v_lshlrev_b32 v%d, 16, v%d", 30 + 2 * i, 10 + i)
        a("v_and_b32 v%d, 0xffff0000, v%d", 31 + 2 * i, 10 + i)
    a("v_pk_add_f32 v[60:61], v[30:31], v[32:33]")
    for i in range(4, 28, 2):
        a("v_pk_add_f32 v[60:61], v[60:61], v[%d:%d]", 30 + i, 31 + i)
    a("v_add_f32 v60, v60, v61")
    dpp_sum16(a, 60, 62)
    a("v_mul_f32 v60, %s, v60", fl(1.0 / 448))
    a("v_mov_b32 v64, 0")
    a("v_mov_b32 v65, 0")
    for i in range(0, 28, 2):
        a("v_pk_add_f32 v[66:67], v[%d:%d], v[60:61] op_sel_hi:[1,0] neg_lo:[0,1] neg_hi:[0,1]", 30 + i, 31 + i)
        a("v_pk_fma_f32 v[64:65], v[66:67], v[66:67], v[64:65]")
    a("v_add_f32 v63, v64, v65")
    dpp_sum16(a, 63, 62)
    a("v_mul_f32 v63, %s, v63", fl(1.0 / 448))
    ln_scalars(a, 60, 63, 64, 65, 62)
    a("v_rcp_f32 v66, v65")
    for i in range(14):
        x0, x1 = 30 + 2 * i, 31 + 2 * i
        a("v_pk_add_f32 v[%d:%d], v[%d:%d], v[64:65] op_sel_hi:[1,0] neg_lo:[0,1] neg_hi:[0,1]", x0, x1, x0, x1)
        a("v_cvt_pk_bf16_f32 v67, v%d, v%d", x0, x1)
        a("v_lshlrev_b32 v%d, 16, v67", x0)
        a("v_and_b32 v%d, 0xffff0000, v67", x1)
        a("v_pk_mul_f32 v[68:69], v[%d:%d], v[66:67] op_sel_hi:[1,0]", x0, x1)
        a("v_pk_fma_f32 v[70:71], v[68:69], v[64:65], v[%d:%d] op_sel:[0,1,0] op_sel_hi:[1,1,1] neg_lo:[1,0,0] neg_hi:[1,0,0]", x0, x1)
        a("v_pk_fma_f32 v[68:69], v[70:71], v[66:67], v[68:69] op_sel_hi:[1,0,1]")
        a("v_cvt_pk_bf16_f32 v%d, v68, v69", 72 + i)
    for i in range(7):
        for j in range(4):
            op = "ds_write_b16" if j % 2 == 0 else "ds_write_b16_d16_hi"
            off = 2304 * i + 36 * j
            a("%s v5, v%d offset:%d", op, 72 + 2 * i + j // 2, off)
            a("%s v6, v%d offset:%d", op, 10 + 2 * i + j // 2, off)
    a("s_waitcnt lgkmcnt(0)")
    a("s_barrier")
    a("v_and_b32 v1, 127, v0")
    a("v_lshrrev_b32 v2, 7, v0")
    a("v_lshrrev_b32 v3, 1, v1")
    a("v_and_b32 v4, 1, v1")
    a("v_mul_u32_u24 v5, 36, v3")
    a("v_lshl_add_u32 v5, v4, 4, v5")
    a("v_mul_u32_u24 v6, 16128, v2")
    a("v_add_u32 v5, v5, v6")
    a("v_lshlrev_b32 v7, 12, v3")
    a("v_lshl_add_u32 v7, v4, 4, v7")
    a("s_nop 0")
    a("v_readfirstlane_b32 s22, v2")
    a("s_lshl_b32 s23, s20, 1")
    a("s_sub_u32 s24, %d, s23", UR + 4064)
    a("s_add_u32 s25, s23, %d", XT)
    a("s_cmp_eq_u32 s22, 0")
    a("s_cselect_b32 s24, s24, s25")
    for k in range(7):
        for j in range(4):
            a("ds_read_b32 v%d, v5 offset:%d", 10 + 4 * k + j, 2304 * k + 4 * j)
    for k in range(7):
        a("s_waitcnt lgkmcnt(%d)", min(15, 4 * (6 - k)))
        a("buffer_store_dwordx4 v[%d:%d], v7, s[12:15], s24 offen", 10 + 4 * k, 13 + 4 * k)
        a("s_add_u32 s24, s24, %d", 64 * 4096)
    if signal:
        a("s_load_dwordx2 s[26:27], s[0:1], 112")
        a("s_waitcnt vmcnt(0) lgkmcnt(0)")
        a("s_barrier")
        a("v_cmp_eq_u32 vcc, 0, v0")
        a("s_and_saveexec_b64 s[28:29], vcc")
        a("s_cbranch_execz L_ln1_sig")
        a("v_mov_b32 v1, 0")
        a("v_mov_b32 v2, 1")
        a("global_atomic_add v1, v2, s[26:27] offset:128 sc1")
        a.label("L_ln1_sig")
        a("s_mov_b64 exec, s[28:29]")
    a.endp()

def cmul(a, dr, di, xr, xi, yr, yi):
    assert di == dr + 1 and xi == xr + 1 and yi == yr + 1 and dr % 2 == 0 and xr % 2 == 0 and yr % 2 == 0
    a("v_pk_mul_f32 v[%d:%d], v[%d:%d], v[%d:%d] op_sel:[0,0] op_sel_hi:[0,1]", dr, di, xr, xi, yr, yi)
    a("v_pk_fma_f32 v[%d:%d], v[%d:%d], v[%d:%d], v[%d:%d] op_sel:[1,1,0] op_sel_hi:[1,0,1] neg_lo:[1,0,0]", dr, di, xr, xi, yr, yi, dr, di)

def cexp(a, dr, di, L, va2, vbr, t0, t1):
    a("v_mul_f32 v%d, %s, v%d", t0, fl(float(L)), va2)
    a("v_mul_f32 v%d, %s, v%d", t1, fl(float(L)), vbr)
    a("v_exp_f32 v%d, v%d", t0, t0)
    a("v_fract_f32 v%d, v%d", t1, t1)
    a("v_cos_f32 v%d, v%d", dr, t1)
    a("v_sin_f32 v%d, v%d", di, t1)
    a("s_nop 0")
    a("v_mul_f32 v%d, v%d, v%d", dr, dr, t0)
    a("v_mul_f32 v%d, v%d, v%d", di, di, t0)

def gen_kgen(a, pre, TB):
    WR = 52 * 256
    CROW = 4 * WR
    a.stamp_begin()
    a("s_load_dwordx4 s[4:7], s[0:1], 8")
    a("s_load_dwordx4 s[8:11], s[0:1], 24")
    a("s_load_dwordx4 s[12:15], s[0:1], 40")
    a("s_load_dwordx2 s[16:17], s[0:1], 56")
    a("s_load_dwordx2 s[18:19], s[0:1], 120")
    a("s_load_dwordx2 s[30:31], s[0:1], 64")
    a("s_lshl_b32 s3, s2, 9")
    a("v_lshl_add_u32 v1, v0, 1, s3")
    a("s_lshl_b32 s3, s2, 1")
    a("v_mov_b32 v2, s3")
    a("s_waitcnt lgkmcnt(0)")
    for k in range(6):
        a("global_load_ushort v%d, v1, s[%d:%d]", 10 + k, 4 + 2 * k, 5 + 2 * k)
    a("global_load_ushort v16, v2, s[16:17]")
    a.srd(20, 18, WS_BYTES)
    pre(a)
    a("v_and_b32 v3, 63, v0")
    a("v_lshrrev_b32 v4, 6, v0")
    a("v_mul_u32_u24 v5, %d, v4", WR)
    a("v_lshl_add_u32 v6, v3, 2, v5")
    for k in range(16):
        a("v_xor_b32 v%d, %d, v6", 100 + k, k << 4)
    a("s_waitcnt vmcnt(%d)", pre.nvm)
    a.stamp()
    for k in range(7):
        a("v_lshlrev_b32 v%d, 16, v%d", 10 + k, 10 + k)
    a("v_mul_f32 v16, %s, v16", fl(LOG2E))
    a("v_exp_f32 v16, v16")
    a("s_nop 0")
    a("v_cvt_pk_bf16_f32 v16, v16, v16")
    a("v_and_b32 v16, 0xffff0000, v16")
    a("v_mul_f32 v17, v16, v10")
    a("v_mul_f32 v18, v16, v11")
    a("v_mul_f32 v17, %s, v17", fl(LOG2E))
    a("v_mul_f32 v18, %s, v18", fl(1.0 / (2 * math.pi)))
    a("v_mul_f32 v12, v16, v12")
    a("v_mul_f32 v13, v16, v13")
    cmul(a, 20, 21, 14, 15, 12, 13)
    cexp(a, 22, 23, 1, 17, 18, 8, 9)
    cexp(a, 24, 25, 8, 17, 18, 8, 9)
    cexp(a, 30, 31, 256, 17, 18, 8, 9)
    cexp(a, 32, 33, 512, 17, 18, 8, 9)
    cexp(a, 36, 37, 1024, 17, 18, 8, 9)
    cexp(a, 44, 45, 2048, 17, 18, 8, 9)
    cmul(a, 34, 35, 30, 31, 32, 33)
    cmul(a, 38, 39, 36, 37, 30, 31)
    cmul(a, 40, 41, 36, 37, 32, 33)
    cmul(a, 42, 43, 36, 37, 34, 35)
    Q = {m: 28 + 2 * m for m in range(1, 9)}
    def wr_x(row, r):
        a("v_cvt_pk_bf16_f32 v7, v%d, -v%d", r, r + 1)
        a("ds_write_b32 v%d, v7 offset:%d", 100 + (row & 15), row * 256)
    def wr_y(j, r):
        row = 20 + j
        a("v_cvt_pk_bf16_f32 v6, v%d, v%d", r, r + 1)
        a("ds_write_b32 v%d, v6 offset:%d", 100 + (row & 15), row * 256)
    a("v_mov_b32 v50, v20")
    a("v_mov_b32 v51, v21")
    a("v_mov_b32 v70, 0x3f80")
    a("v_lshlrev_b32 v71, 2, v3")
    a("ds_write_b32 v71, v70 offset:%d", CROW)
    wr_y(1, 24)
    cur = 24
    ytasks = []
    xs = []
    for e in range(1, 8):
        xs.append(("z", e))
    for e in range(4):
        xs.append(("q", 8 + e, 1, 2 * e))
    for (row, m, e) in ((12, 2, 0), (13, 2, 4), (14, 3, 0), (15, 3, 4), (16, 4, 0), (17, 5, 0), (18, 6, 0), (19, 7, 0), (20, 8, 0)):
        xs.append(("q", row, m, e))
    wr_x(0, 50)
    for j in range(2, 32):
        nxt = 70 if cur != 70 else 72
        cmul(a, nxt, nxt + 1, cur, cur + 1, 24, 25)
        wr_y(j, nxt)
        cur = nxt
        if xs:
            t = xs.pop(0)
            if t[0] == "z":
                e = t[1]
                cmul(a, 50 + 2 * e, 51 + 2 * e, 48 + 2 * e, 49 + 2 * e, 22, 23)
                wr_x(e, 50 + 2 * e)
            else:
                _, row, m, e = t
                cmul(a, 74, 75, Q[m], Q[m] + 1, 50 + 2 * e, 51 + 2 * e)
                wr_x(row, 74)
    assert not xs
    a.stamp()
    a("v_and_b32 v6, 31, v3")
    a("v_lshrrev_b32 v7, 5, v3")
    a("v_and_b32 v8, 15, v6")
    a("v_xor_b32 v8, v8, v7")
    a("v_lshlrev_b32 v8, 4, v8")
    a("v_lshl_add_u32 v8, v6, 8, v8")
    a("v_add_u32 v8, v8, v5")
    a("v_add_u32 v9, 20, v6")
    a("v_and_b32 v10, 15, v9")
    a("v_xor_b32 v10, v10, v7")
    a("v_lshlrev_b32 v10, 4, v10")
    a("v_lshl_add_u32 v10, v9, 8, v10")
    a("v_add_u32 v10, v10, v5")
    a("v_cmp_eq_u32 vcc, 0, v6")
    a("v_mov_b32 v9, %d", CROW)
    a("s_nop 0")
    a("v_cndmask_b32 v10, v10, v9, vcc")
    a("s_waitcnt lgkmcnt(0)")
    for s in range(8):
        a("v_xor_b32 v11, %d, v8", 32 * s)
        a("v_xor_b32 v12, %d, v10", 32 * s)
        a("ds_read_b128 v[%d:%d], v11", 16 + 8 * s, 19 + 8 * s)
        a("ds_read_b128 v[%d:%d], v12", 20 + 8 * s, 23 + 8 * s)
    for s in range(8):
        a("s_waitcnt lgkmcnt(%d)", 2 * (7 - s))
        a("v_mfma_f32_32x32x16_bf16 v[80:95], v[%d:%d], v[%d:%d], %s", 16 + 8 * s, 19 + 8 * s, 20 + 8 * s, 23 + 8 * s,
          "0" if s == 0 else "v[80:95]")
    a("v_lshl_add_u32 v11, v3, 4, v5")
    a("s_nop 15")
    for q in range(4):
        a("ds_write_b128 v11, v[%d:%d] offset:%d", 80 + 4 * q, 83 + 4 * q, 1024 * q)
    a("s_waitcnt lgkmcnt(0)")
    a("s_barrier")
    a("v_lshlrev_b32 v11, 4, v0")
    for w in range(4):
        a("ds_read_b128 v[%d:%d], v11 offset:%d", 80 + 4 * w, 83 + 4 * w, WR * w)
    a("s_waitcnt lgkmcnt(0)")
    for j in range(4):
        a("v_add_f32 v%d, v%d, v%d", 80 + j, 80 + j, 84 + j)
        a("v_add_f32 v%d, v%d, v%d", 88 + j, 88 + j, 92 + j)
    for j in range(4):
        a("v_add_f32 v%d, v%d, v%d", 80 + j, 80 + j, 88 + j)
    a("v_readfirstlane_b32 s27, v4")
    a("v_and_b32 v6, 31, v3")
    a("v_lshrrev_b32 v7, 5, v3")
    a("v_cmp_eq_u32 vcc, 1, v7")
    a("s_cmp_eq_u32 s27, 0")
    a("s_cbranch_scc1 L_kg_c0")
    a("s_cmp_eq_u32 s27, 1")
    a("s_cbranch_scc1 L_kg_c1")
    a("s_cmp_eq_u32 s27, 2")
    a("s_cbranch_scc1 L_kg_c2")
    a("s_branch L_kg_cend")
    a.label("L_kg_c0")
    a("v_lshlrev_b32 v8, 3, v6")
    a("v_lshl_add_u32 v8, v7, 2, v8")
    a("v_lshlrev_b32 v8, 2, v8")
    for e in range(4):
        a("ds_write_b32 v8, v%d offset:%d", 80 + e, TB + 4 * e)
    a("s_branch L_kg_cend")
    a.label("L_kg_c1")
    a("v_lshlrev_b32 v8, 4, v6")
    a("v_lshlrev_b32 v9, 3, v6")
    a("v_add_u32 v8, %d, v8", 256 * 4)
    a("v_add_u32 v9, %d, v9", 384 * 4)
    a("v_add_u32 v10, 8, v8")
    a("v_add_u32 v12, 256, v9")
    a("v_cndmask_b32 v8, v8, v9, vcc")
    a("v_cndmask_b32 v10, v10, v12, vcc")
    a("ds_write_b32 v8, v80 offset:%d", TB)
    a("ds_write_b32 v8, v81 offset:%d", TB + 4)
    a("ds_write_b32 v10, v82 offset:%d", TB)
    a("ds_write_b32 v10, v83 offset:%d", TB + 4)
    a("s_branch L_kg_cend")
    a.label("L_kg_c2")
    a("v_lshlrev_b32 v8, 2, v6")
    a("v_add_u32 v8, %d, v8", 512 * 4)
    a("v_lshlrev_b32 v9, 2, v6")
    a("v_add_u32 v9, %d, v9", 640 * 4)
    a("v_cndmask_b32 v8, v8, v9, vcc")
    a("v_mov_b32 v9, 128")
    a("v_mov_b32 v10, 0")
    a("v_cndmask_b32 v9, v9, v10, vcc")
    for e in range(4):
        a("ds_write_b32 v8, v%d offset:%d", 80 + e, TB)
        if e == 0:
            a("v_add_u32 v8, 128, v8")
        elif e < 3:
            a("v_add_u32 v8, v8, v9")
    a.label("L_kg_cend")
    a("s_waitcnt lgkmcnt(0)")
    a("s_barrier")
    a.stamp()

def gen_expand(a, TB):
    a("v_add_u32 v1, 1, v0")
    a("s_mul_i32 s24, s2, %d", KSTR)
    a("s_add_u32 s24, s24, %d", KS)
    a("s_add_u32 s25, s24, %d", KO)
    a("s_mov_b32 s26, 0")
    a.label("L_kg_exp")
    a("v_lshlrev_b32 v2, 3, v1")
    a("v_subrev_u32 v2, 15, v2")
    for k in range(9):
        t = 20 + 8 * k
        a("v_add_u32 v%d, %d, v2", t, k)
        a("v_max_i32 v%d, 0, v%d", t + 1, t)
        a("v_cvt_f32_u32 v%d, v%d", t + 2, t + 1)
        a("v_cvt_pk_bf16_f32 v%d, v%d, v%d", t + 2, t + 2, t + 2)
        a("v_lshrrev_b32 v%d, 16, v%d", t + 2, t + 2)
        a("v_subrev_u32 v%d, 17024, v%d", t + 2, t + 2)
        a("v_min_u32 v%d, 127, v%d", t + 1, t + 1)
        a("v_max_i32 v%d, v%d, v%d", t + 2, t + 2, t + 1)
        a("v_lshlrev_b32 v%d, 2, v%d", t + 2, t + 2)
        a("ds_read_b32 v%d, v%d offset:%d", t + 7, t + 2, TB)
    a("s_waitcnt lgkmcnt(0)")
    for k in range(9):
        t = 20 + 8 * k
        a("v_cmp_le_i32 vcc, 0, v%d", t)
        a("s_nop 1")
        a("v_cndmask_b32 v%d, 0, v%d, vcc", t + 7, t + 7)
    V = [27 + 8 * k for k in range(9)]
    for k in range(4):
        a("v_cvt_pk_bf16_f32 v%d, v%d, v%d", 100 + k, V[2 * k], V[2 * k + 1])
        a("v_cvt_pk_bf16_f32 v%d, v%d, v%d", 104 + k, V[2 * k + 1], V[2 * k + 2])
    a("v_lshlrev_b32 v3, 4, v1")
    a("buffer_store_dwordx4 v[100:103], v3, s[20:23], s24 offen")
    a("buffer_store_dwordx4 v[104:107], v3, s[20:23], s25 offen")
    a("v_cmp_eq_u32 vcc, 0, v0")
    a("s_and_saveexec_b64 s[28:29], vcc")
    a("s_cbranch_execz L_kg_done")
    for k in range(4):
        a("v_mov_b32 v%d, 0", 108 + k)
    a("v_mov_b32 v3, 0")
    a("buffer_store_dwordx4 v[108:111], v3, s[20:23], s24 offen")
    a("buffer_store_dwordx4 v[108:111], v3, s[20:23], s25 offen")
    a("ds_read_b64 v[112:113], v3 offset:%d", TB + 638 * 4)
    a("ds_read_b32 v114, v3 offset:%d", TB + 640 * 4)
    a("s_waitcnt lgkmcnt(0)")
    a("v_cvt_pk_bf16_f32 v20, v113, v113")
    a("v_cvt_pk_bf16_f32 v21, v113, v114")
    a("v_cvt_pk_bf16_f32 v22, v114, v114")
    a("v_mov_b32 v23, v22")
    a("v_mov_b32 v24, v20")
    a("v_mov_b32 v25, v22")
    a("v_mov_b32 v26, v22")
    a("v_mov_b32 v27, v22")
    a("v_mov_b32 v3, %d", 257 * 16)
    a("buffer_store_dwordx4 v[20:23], v3, s[20:23], s24 offen")
    a("buffer_store_dwordx4 v[24:27], v3, s[20:23], s25 offen")
    a.label("L_kg_done")
    a("s_mov_b64 exec, -1")
    a.stamp_end(100, "kg")
    a.endp()

def gen_k1(a):
    import k2
    a.kstart("k1_kernel")
    a("s_cmp_ge_u32 s2, 744")
    a("s_cbranch_scc1 L_k1_exit")
    a("s_cmp_lt_u32 s2, 448")
    a("s_cbranch_scc1 L_k1_kgen")
    a("s_cmp_lt_u32 s2, 576")
    a("s_cbranch_scc1 L_k1_ln1")
    a("s_sub_u32 s3, s2, 576")
    k2.gen_wprep(a)
    a.label("L_k1_ln1")
    a("s_sub_u32 s3, s2, 448")
    gen_ln1(a)
    a.label("L_k1_kgen")
    class Pre:
        nvm = 0
        def __call__(self, a):
            pass
    gen_kgen(a, Pre(), 4096)
    gen_expand(a, 4096)
    a.label("L_k1_exit")
    a("s_endpgm")
```

```python
from common import *
from k1 import ln_scalars
import math
SLOT = 28672
CSL = 155648
STX = 159744
LDS = STX + 4096
VGPR = 256
HF = 16
ACC = [128, 144]
WB = 160
CSV = 176
T = 192

class Trk:
    def __init__(self):
        self.n = 0
    def issue(self):
        self.n += 1
        return self.n
    def need(self, idx):
        return self.n - idx

def epilogue_ops(acc, tile_store, pk):
    ops = []
    g = acc
    u = acc + 8
    tq = T + 16
    P = lambda r: "v[%d:%d]" % (r, r + 1)
    def mul(d, x, y, n):
        if pk:
            for r in range(0, n, 2):
                ops.append("v_pk_mul_f32 %s, %s, %s" % (P(d + r), P(x + r), P(y + r)))
        else:
            for r in range(n):
                ops.append("v_mul_f32 v%d, v%d, v%d" % (d + r, x + r, y + r))
    if pk:
        for r in range(0, 16, 2):
            ops.append("v_pk_fma_f32 %s, v[8:9], %s, %s op_sel:[0,0,0] op_sel_hi:[0,1,1]" % (P(acc + r), P(CSV + r), P(acc + r)))
        for r in range(0, 16, 2):
            ops.append("v_pk_mul_f32 %s, v[8:9], %s op_sel:[1,0] op_sel_hi:[1,1]" % (P(acc + r), P(acc + r)))
    else:
        for r in range(16):
            ops.append("v_fma_f32 v%d, v8, v%d, v%d" % (acc + r, CSV + r, acc + r))
        for r in range(16):
            ops.append("v_mul_f32 v%d, v9, v%d" % (acc + r, acc + r))
    mul(tq, g, g, 8)
    if pk:
        for r in range(0, 8, 2):
            ops.append("v_pk_fma_f32 %s, %s, v[2:3], v[2:3] op_sel:[0,1,0] op_sel_hi:[1,1,0]" % (P(tq + r), P(tq + r)))
    else:
        for r in range(8):
            ops.append("v_fma_f32 v%d, v%d, v3, v2" % (tq + r, tq + r))
    mul(tq, tq, g, 8)
    for r in range(8):
        ops.append("v_exp_f32 v%d, v%d" % (tq + r, tq + r))
    mul(g, g, u, 8)
    for r in range(8):
        ops.append("v_add_f32 v%d, 1.0, v%d" % (tq + r, tq + r))
    for r in range(8):
        ops.append("v_rcp_f32 v%d, v%d" % (tq + r, tq + r))
    mul(g, g, tq, 8)
    for r in range(0, 8, 2):
        ops.append("v_cvt_pk_bf16_f32 v%d, v%d, v%d" % (T + 32 + r // 2, g + r, g + r + 1))
    ops.append(tile_store)
    return ops

def gen_k3(a):
    a.kstart("k3_kernel")
    a("s_cmp_ge_u32 s2, 256")
    a("s_cbranch_scc1 L_k3_exit")
    a.stamp_begin()
    a("s_load_dwordx2 s[6:7], s[0:1], 120")
    a("s_and_b32 s3, s2, 7")
    a("s_lshr_b32 s4, s2, 3")
    a("s_and_b32 s21, s3, 1")
    a("s_lshl_b32 s21, s21, 3")
    a("s_and_b32 s22, s4, 7")
    a("s_add_u32 s21, s21, s22")
    a("s_lshr_b32 s22, s3, 1")
    a("s_lshl_b32 s22, s22, 2")
    a("s_lshr_b32 s23, s4, 3")
    a("s_add_u32 s22, s22, s23")
    a("v_and_b32 v1, 63, v0")
    a("v_lshrrev_b32 v2, 6, v0")
    a("s_nop 0")
    a("v_readfirstlane_b32 s20, v2")
    a("v_lshlrev_b32 v6, 4, v1")
    a("s_and_b32 s18, s20, 3")
    a("s_lshr_b32 s19, s20, 2")
    a("s_mul_i32 s29, s20, 3584")
    a("s_mul_i32 s28, s21, %d", 7 * SLOT)
    a("s_add_u32 s28, s28, s29")
    a("s_add_u32 s28, s28, %d", WGU)
    a("s_waitcnt lgkmcnt(0)")
    a.srd(8, 6, WS_BYTES)
    vm = Trk()
    slot_addr = {0: 98304, 1: 126976, 2: 32768, 3: 65536, 4: 0, 5: 98304, 6: 126976}
    wlast = {}
    def wdma(t):
        seq = [["s_add_u32 s30, s29, %d" % slot_addr[t], "s_add_u32 s31, s28, %d" % (t * SLOT), "s_mov_b32 m0, s30", "s_nop 0",
                "buffer_load_dwordx4 v6, s[8:11], s31 offen lds"]]
        for q in range(1, 3):
            seq.append(["buffer_load_dwordx4 v6, s[8:11], s31 offen offset:%d lds" % (1024 * q)])
        seq.append(["s_mov_b32 exec_hi, 0", "buffer_load_dwordx4 v6, s[8:11], s31 offen offset:3072 lds", "s_mov_b32 exec_hi, -1", "s_nop 3"])
        return seq
    def emit_wdma(t):
        for g in wdma(t):
            for i in g:
                a(i)
                if i.startswith("buffer"):
                    vm.issue()
        wlast[t] = vm.n
    a("s_lshl_b32 s24, s22, 2")
    a("s_add_u32 s24, s24, s18")
    a("s_mul_i32 s24, s24, %d", SLOT)
    a("s_add_u32 s24, s24, %d", HT)
    a("s_lshl_b32 s25, s19, 12")
    a("s_add_u32 s26, s24, s25")
    a("s_lshl_b32 s27, s18, 13")
    a("s_add_u32 s27, s27, s25")
    hidx = []
    def emit_chunk(c):
        a("s_mov_b32 m0, s27")
        a("s_add_u32 s27, s27, 32768")
        for n in range(4):
            a("buffer_load_dwordx4 v6, s[8:11], s26 offen offset:%d lds", 1024 * n)
            vm.issue()
        a("s_add_u32 s26, s26, 8192")
        hidx.append(vm.n)
    emit_chunk(0)
    emit_wdma(0)
    emit_wdma(1)
    hidx[0] = vm.n
    a("s_mul_i32 s32, s21, 896")
    a("s_add_u32 s32, s32, %d", CS)
    a("s_mov_b32 m0, %d", CSL)
    a("s_mov_b32 exec_hi, 0x00ffffff")
    a("buffer_load_dwordx4 v6, s[8:11], s32 offen lds")
    a("s_mov_b32 exec_hi, -1")
    vm.issue()
    def emit_chunk3():
        a("s_lshl_b32 s25, s19, 11")
        a("s_add_u32 s26, s24, s25")
        a("s_add_u32 s26, s26, 24576")
        a("s_lshl_b32 s27, s18, 13")
        a("s_add_u32 s27, s27, s25")
        a("s_mov_b32 m0, s27")
        a("s_nop 0")
        for n in range(2):
            a("buffer_load_dwordx4 v6, s[8:11], s26 offen offset:%d lds", 1024 * n)
            vm.issue()
        hidx.append(vm.n)
    a("v_and_b32 v3, 15, v1")
    a("v_lshrrev_b32 v4, 2, v3")
    a("v_lshlrev_b32 v4, 6, v4")
    a("v_bfe_u32 v5, v1, 4, 1")
    a("v_lshl_add_u32 v4, v5, 5, v4")
    a("v_bfe_u32 v5, v1, 1, 1")
    a("v_lshl_add_u32 v4, v5, 4, v4")
    a("v_and_b32 v5, 1, v1")
    a("v_lshl_add_u32 v4, v5, 3, v4")
    a("v_lshrrev_b32 v5, 5, v1")
    a("v_lshl_add_u32 v4, v5, 9, v4")
    a("s_lshl_b32 s34, s18, 13")
    a("v_add_u32 v5, s34, v4")
    a("v_add_u32 v7, 65536, v5")
    a("s_mov_b32 s36, 0x3f803f80")
    for k in range(8):
        a("v_mov_b32 v%d, 0", T + k)
    c0 = math.sqrt(2.0 / math.pi)
    L2E = math.log2(math.e)
    a("v_mov_b32 v2, %s", fl(-2 * L2E * c0))
    a("v_mov_b32 v3, %s", fl(-2 * L2E * c0 * 0.044715))
    a("v_lshrrev_b32 v12, 5, v1")
    a("v_lshlrev_b32 v12, 6, v12")
    a("s_lshl_b32 s33, s19, 7")
    a("s_add_u32 s33, s33, %d", CSL)
    a("v_add_u32 v12, s33, v12")
    a("s_lshl_b32 s41, s22, 2")
    a("s_add_u32 s41, s41, s18")
    a("s_mul_i32 s41, s41, 112")
    a("s_mul_i32 s42, s21, 7")
    a("s_add_u32 s41, s41, s42")
    a("s_add_u32 s41, s41, s19")
    a("s_lshl_b32 s41, s41, 10")
    a("s_add_u32 s41, s41, %d", ACT)
    WA = [11, 13, 14, 15]
    a("s_cmp_eq_u32 s19, 0")
    for r in range(4):
        a("s_mov_b32 s34, %d", slot_addr[2 * r])
        a("s_cselect_b32 s33, s34, %d", slot_addr[min(2 * r + 1, 6)])
        a("v_add_u32 v%d, s33, v6", WA[r])
    emit_chunk(1)
    a.stamp()
    lg = Trk()
    PD = 4
    ridx = {}
    def rd(r, s):
        k = 28 * r + s
        a("ds_read_b128 v[%d:%d], v%d offset:%d", WB + 4 * (k % PD), WB + 4 * (k % PD) + 3, WA[r], 1024 * s)
        ridx[k] = lg.issue()
    def mfma(r, s):
        k = 28 * r + s
        a("s_waitcnt lgkmcnt(%d)", lg.need(ridx[k]))
        acc = ACC[r % 2]
        a("v_mfma_f32_32x32x16_bf16 v[%d:%d], v[%d:%d], v[%d:%d], %s", acc, acc + 15, WB + 4 * (k % PD), WB + 4 * (k % PD) + 3,
          HF + 4 * s, HF + 4 * s + 3, "0" if s == 0 else "v[%d:%d]" % (acc, acc + 15))
    def store_op(r):
        return "buffer_store_dwordx4 v[%d:%d], v6, s[8:11], s41 offen offset:%d sc1" % (T + 32, T + 35, 2048 * (r % 2))
    state = {"pend": [], "cs": None, "dma": []}
    def sync(tiles):
        a("s_waitcnt vmcnt(%d)", vm.need(max(wlast[t] for t in tiles)))
        a("s_barrier")
    def dma_step():
        if state["dma"]:
            t, g = state["dma"].pop(0)
            for i in g:
                a(i)
                if i.startswith("buffer"):
                    vm.issue()
                    wlast[t] = vm.n
    def start_ep(r, pk=False):
        for q in range(4):
            a("ds_read_b128 v[%d:%d], v12 offset:%d", CSV + 4 * q, CSV + 4 * q + 3, 256 * r + 16 * q)
            state["cs"] = lg.issue()
        state["pend"] = epilogue_ops(ACC[r % 2], store_op(r), pk)
    def drain(n, r):
        if state["cs"] is not None:
            a("s_waitcnt lgkmcnt(%d)", lg.need(state["cs"]))
            state["cs"] = None
        for _ in range(min(n, len(state["pend"]))):
            i = state["pend"].pop(0)
            a(i)
            if i.startswith("buffer"):
                vm.issue()
                if r % 2 == 1:
                    a("s_add_u32 s41, s41, 4096")
    for c in range(4):
        a("s_waitcnt vmcnt(%d)", vm.need(hidx[c]))
        a("s_barrier")
        if c == 0:
            emit_chunk(2)
        if c == 1:
            emit_chunk3()
        if c == 2:
            emit_wdma(2)
        if c == 3:
            emit_wdma(3)
        ns = 8 if c < 3 else 4
        for n in range(ns):
            s_ = 8 * c + n
            vb, off = {0: (5, 0), 1: (5, 32768), 2: (7, 0), 3: (5, 0)}[c]
            for jj in range(2):
                a("ds_read_b64_tr_b16 v[%d:%d], v%d offset:%d", HF + 4 * s_ + 2 * jj, HF + 4 * s_ + 2 * jj + 1, vb, off + 1024 * n + 256 * jj)
                lg.issue()
        for n in range(PD - 1):
            rd(0, 8 * c + n)
        a("s_waitcnt lgkmcnt(%d)", PD - 1)
        a("s_cmp_lg_u32 s19, 0")
        a("s_cbranch_scc1 L_k3_st1_%d", c)
        for half in range(2):
            if half:
                a("s_branch L_k3_st2_%d", c)
                a.label("L_k3_st1_%d" % c)
            r0 = 4 * (8 * c + half * ns // 2)
            for r in range(r0, r0 + 2 * ns):
                a("v_dot2_f32_bf16 v%d, v%d, s36, v%d", T + r % 4, HF + r, T + r % 4)
                a("v_dot2_f32_bf16 v%d, v%d, v%d, v%d", T + 4 + r % 4, HF + r, HF + r, T + 4 + r % 4)
        a.label("L_k3_st2_%d" % c)
        for n in range(ns):
            if n + PD - 1 < ns:
                rd(0, 8 * c + n + PD - 1)
            mfma(0, 8 * c + n)
        a.stamp()
    a("s_nop 3")
    a("v_add_f32 v%d, v%d, v%d", T, T, T + 1)
    a("v_add_f32 v%d, v%d, v%d", T + 2, T + 2, T + 3)
    a("v_add_f32 v%d, v%d, v%d", T + 4, T + 4, T + 5)
    a("v_add_f32 v%d, v%d, v%d", T + 6, T + 6, T + 7)
    a("v_add_f32 v%d, v%d, v%d", T, T, T + 2)
    a("v_add_f32 v%d, v%d, v%d", T + 1, T + 4, T + 6)
    a("s_lshl_b32 s33, s20, 9")
    a("s_add_u32 s33, s33, %d", STX)
    a("v_lshl_add_u32 v%d, v1, 3, s33", T + 8)
    a("ds_write_b64 v%d, v[%d:%d]", T + 8, T, T + 1)
    a("s_xor_b32 s33, s33, 2048")
    a("v_lshl_add_u32 v%d, v1, 3, s33", T + 8)
    a("s_waitcnt lgkmcnt(0)")
    sync([2, 3])
    a("ds_read_b64 v[%d:%d], v%d", T + 2, T + 3, T + 8)
    for n in range(PD - 1):
        rd(1, n)
    state["dma"] = [(4, g) for g in wdma(4)] + [(5, g) for g in wdma(5)] + [(6, g) for g in wdma(6)]
    a("s_waitcnt lgkmcnt(%d)", PD - 1)
    a("v_add_f32 v%d, v%d, v%d", T, T, T + 2)
    a("v_add_f32 v%d, v%d, v%d", T + 4, T + 1, T + 3)
    a("v_mov_b32 v%d, v%d", T + 1, T)
    a("v_mov_b32 v%d, v%d", T + 5, T + 4)
    a("s_nop 1")
    a("v_permlane32_swap_b32 v%d, v%d", T, T + 1)
    a("v_permlane32_swap_b32 v%d, v%d", T + 4, T + 5)
    a("s_nop 1")
    a("v_add_f32 v%d, v%d, v%d", T, T, T + 1)
    a("v_add_f32 v%d, v%d, v%d", T + 4, T + 4, T + 5)
    a("v_mul_f32 v%d, %s, v%d", T, fl(1.0 / 448), T)
    a("v_mul_f32 v%d, %s, v%d", T + 4, fl(1.0 / 448), T + 4)
    a("v_fma_f32 v%d, -v%d, v%d, v%d", T + 4, T, T, T + 4)
    a("v_max_f32 v%d, 0, v%d", T + 4, T + 4)
    ln_scalars(a, T, T + 4, 8, 9, T + 8)
    a("v_rcp_f32 v%d, v9", T + 9)
    a("v_sub_f32 v8, 0, v8")
    a("v_fma_f32 v%d, -v9, v%d, 1.0", T + 10, T + 9)
    a("v_fma_f32 v9, v%d, v%d, v%d", T + 10, T + 9, T + 9)
    a.stamp()
    def round_(r, nxt):
        for s in range(28):
            if s + PD - 1 < 28:
                rd(r, s + PD - 1)
            elif nxt:
                if s + PD - 1 == 28:
                    sync([t for t in (2 * r + 2, 2 * r + 3) if t < 7])
                rd(r + 1, s + PD - 1 - 28)
            mfma(r, s)
            if s % 2 == 0:
                dma_step()
            if s == 0:
                start_ep(r - 1)
            if s >= 2 and state["pend"]:
                drain(4 if s < 27 else 1000, r - 1)
    round_(1, True)
    a.stamp()
    round_(2, True)
    a.stamp()
    a("s_cmp_lg_u32 s19, 0")
    a("s_cbranch_scc1 L_k3_p1")
    sv = (lg.n, vm.n)
    round_(3, False)
    a.stamp()
    a("s_nop 7")
    start_ep(3, True)
    drain(1000, 3)
    a.stamp_end(101, "k3")
    a.endp()
    a.label("L_k3_p1")
    lg.n, vm.n = sv
    a("s_lshr_b32 s33, s2, 3")
    a("s_lshl_b32 s33, s33, 2")
    a("s_add_u32 s33, s33, s18")
    a("s_mul_i32 s33, s33, 12544")
    a("s_add_u32 s33, s33, %d", WD)
    for q in range(13):
        if q and q % 4 == 0:
            a("s_add_u32 s33, s33, 4096")
        if q == 12:
            a("s_mov_b32 exec_hi, 0")
            a("s_mov_b32 exec_lo, 0xffff")
        pass
    a("s_mov_b64 exec, -1")
    a("s_nop 7")
    start_ep(2, True)
    drain(1000, 2)
    a.endp()
    a.label("L_k3_exit")
    a("s_endpgm")
```

```python
from common import *
LDS = 65536 + 8192
VGPR = 256
PD = 5
def gen_k4(a):
    a.kstart("k4_kernel")
    a("s_cmp_ge_u32 s2, 224")
    a("s_cbranch_scc1 L_k4_exit")
    a.stamp_begin()
    a("s_load_dwordx2 s[6:7], s[0:1], 120")
    a("s_load_dwordx2 s[4:5], s[0:1], 104")
    a("s_and_b32 s3, s2, 7")
    a("s_lshr_b32 s16, s2, 3")
    a("s_and_b32 s21, s16, 3")
    a("s_lshl_b32 s3, s3, 2")
    a("s_add_u32 s21, s21, s3")
    a("s_lshr_b32 s22, s16, 2")
    a("v_and_b32 v1, 63, v0")
    a("v_lshrrev_b32 v2, 6, v0")
    a("s_nop 0")
    a("v_readfirstlane_b32 s20, v2")
    a("v_lshlrev_b32 v6, 4, v1")
    a("s_waitcnt lgkmcnt(0)")
    a.srd(8, 6, WS_BYTES)
    a.srd(12, 4, 2048 * 896)
    a("v_and_b32 v3, 31, v1")
    a("v_mul_u32_u24 v3, 896, v3")
    a("v_lshrrev_b32 v4, 5, v1")
    a("v_lshl_add_u32 v3, v4, 5, v3")
    a("s_lshr_b32 s23, s20, 1")
    a("s_lshl_b32 s24, s21, 1")
    a("s_add_u32 s24, s24, s23")
    a("s_mul_i32 s24, s24, %d", 32 * 896)
    a("s_and_b32 s23, s20, 1")
    a("s_lshl_b32 s25, s22, 1")
    a("s_add_u32 s25, s25, s23")
    a("s_lshl_b32 s25, s25, 6")
    a("s_add_u32 s24, s24, s25")
    a("s_lshr_b32 s23, s20, 1")
    a("s_lshl_b32 s25, s21, 1")
    a("s_add_u32 s25, s25, s23")
    a("s_mul_i32 s25, s25, 28672")
    a("s_and_b32 s23, s20, 1")
    a("s_lshl_b32 s32, s22, 1")
    a("s_add_u32 s32, s32, s23")
    a("s_lshl_b32 s32, s32, 11")
    a("s_add_u32 s25, s25, s32")
    a("s_add_u32 s25, s25, %d", HT)
    a("s_lshl_b32 s33, s20, 11")
    a("s_add_u32 s33, s33, 65536")
    a("s_mov_b32 m0, s33")
    a("s_nop 0")
    a("buffer_load_dwordx4 v6, s[8:11], s25 offen lds")
    a("buffer_load_dwordx4 v6, s[8:11], s25 offen offset:1024 lds")
    a("v_and_b32 v16, 15, v1")
    a("v_lshrrev_b32 v17, 2, v16")
    a("v_lshlrev_b32 v17, 6, v17")
    a("v_bfe_u32 v18, v1, 4, 1")
    a("v_lshl_add_u32 v17, v18, 5, v17")
    a("v_and_b32 v18, 3, v1")
    a("v_lshl_add_u32 v17, v18, 3, v17")
    a("v_lshrrev_b32 v18, 5, v1")
    a("v_lshl_add_u32 v17, v18, 10, v17")
    a("v_add_u32 v17, s33, v17")
    nv = 2
    a("s_mul_i32 s26, s20, 28")
    a("s_mul_i32 s27, s22, 224")
    a("s_add_u32 s27, s27, s26")
    a("s_lshl_b32 s27, s27, 10")
    a("s_add_u32 s28, s27, %d", WD)
    a("s_add_u32 s29, s28, %d", 112 * 1024)
    a("s_mul_i32 s27, s21, 224")
    a("s_add_u32 s27, s27, s26")
    a("s_lshl_b32 s27, s27, 10")
    a("s_add_u32 s30, s27, %d", ACT)
    a("s_add_u32 s31, s30, %d", 112 * 1024)
    FR = 96
    issued = []
    def ld(s):
        b = FR + 16 * (s % PD)
        order = (2, 0, 3, 1)
        for q in order:
            a("buffer_load_dwordx4 v[%d:%d], v6, s[8:11], s%d offen offset:%d", b + 4 * q, b + 4 * q + 3, 28 + q, 1024 * (s % 4))
            issued.append((s, q))
        if s % 4 == 3:
            for q in range(4):
                a("s_add_u32 s%d, s%d, 4096", 28 + q, 28 + q)
    for s in range(PD):
        ld(s)
    a.stamp()
    for s in range(28):
        if s in (1, 8, 16):
            a.stamp()
        b = FR + 16 * (s % PD)
        last = max(i for i, e in enumerate(issued) if e[0] == s)
        first2 = last - 2
        a("s_waitcnt vmcnt(%d)", len(issued) - 1 - first2)
        def mf(ta, tb):
            acc = 32 + 16 * (ta + 2 * tb)
            a("v_mfma_f32_32x32x16_bf16 v[%d:%d], v[%d:%d], v[%d:%d], %s", acc, acc + 15, b + 4 * ta, b + 4 * ta + 3,
              b + 8 + 4 * tb, b + 8 + 4 * tb + 3, "0" if s == 0 else "v[%d:%d]" % (acc, acc + 15))
        mf(0, 0)
        a("s_waitcnt vmcnt(%d)", len(issued) - 1 - (last - 1))
        mf(0, 1)
        a("s_waitcnt vmcnt(%d)", len(issued) - 1 - last)
        mf(1, 0)
        mf(1, 1)
        if s + PD < 28:
            ld(s + PD)
    a.stamp()
    a("s_lshl_b32 s26, s20, 14")
    a("v_add_u32 v7, s26, v6")
    a("s_nop 7")
    for tl in range(4):
        for q in range(4):
            a("ds_write_b128 v7, v[%d:%d] offset:%d", 32 + 16 * tl + 4 * q, 35 + 16 * tl + 4 * q, 4096 * tl + 1024 * q)
    a("s_waitcnt lgkmcnt(0)")
    a("s_barrier")
    a("s_lshl_b32 s26, s20, 12")
    a("v_add_u32 v7, s26, v6")
    for w in range(4):
        for q in range(4):
            a("ds_read_b128 v[%d:%d], v7 offset:%d", 32 + 16 * w + 4 * q, 35 + 16 * w + 4 * q, 16384 * w + 1024 * q)
    for q in range(4):
        a("ds_read_b64_tr_b16 v[%d:%d], v17 offset:%d", 8 + 2 * q, 9 + 2 * q, 256 * q)
    a("s_waitcnt lgkmcnt(0)")
    for r in range(16):
        a("v_add_f32 v%d, v%d, v%d", 32 + r, 32 + r, 48 + r)
        a("v_add_f32 v%d, v%d, v%d", 64 + r, 64 + r, 80 + r)
    for r in range(16):
        a("v_add_f32 v%d, v%d, v%d", 32 + r, 32 + r, 64 + r)
    for r in range(0, 16, 2):
        a("v_cvt_pk_bf16_f32 v%d, v%d, v%d", 48 + r // 2, 32 + r, 33 + r)
    for r in range(8):
        a("v_lshlrev_b32 v%d, 16, v%d", 32 + 2 * r, 48 + r)
        a("v_and_b32 v%d, 0xffff0000, v%d", 33 + 2 * r, 48 + r)
        a("v_lshlrev_b32 v%d, 16, v%d", 64 + 2 * r, 8 + r)
        a("v_and_b32 v%d, 0xffff0000, v%d", 65 + 2 * r, 8 + r)
    for r in range(16):
        a("v_add_f32 v%d, v%d, v%d", 32 + r, 32 + r, 64 + r)
    for r in range(0, 16, 2):
        a("v_cvt_pk_bf16_f32 v%d, v%d, v%d", 48 + r // 2, 32 + r, 33 + r)
    a("buffer_store_dwordx4 v[48:51], v3, s[12:15], s24 offen")
    a("buffer_store_dwordx4 v[52:55], v3, s[12:15], s24 offen offset:16")
    a.stamp_end(100, "k4")
    a.endp()
    a.label("L_k4_exit")
    a("s_endpgm")
```
